```python
import torch

def _softmax(x, axis=-1):
    return torch.softmax(x, dim=axis)
def _gelu(x):
    return torch.nn.functional.gelu(x, approximate="tanh")
def _silu(x):
    return torch.nn.functional.silu(x)
def _sigmoid(x):
    return torch.sigmoid(x)
def _layernorm(x, axis=-1, eps=1e-5):
    m = x.mean(dim=axis, keepdim=True)
    v = x.var(dim=axis, keepdim=True, unbiased=False)
    return (x - m) / torch.sqrt(v + eps)
def _scatter_add(tgt, idx, src, axis=0):
    return tgt.clone().index_add_(axis, idx, src)
def _segment_sum(src, seg, n):
    out = torch.zeros((n,) + src.shape[1:], dtype=src.dtype)
    return out.index_add_(0, seg, src)
def _pad(x, pw):
    flat = tuple(v for pair in reversed(pw) for v in pair)
    return torch.nn.functional.pad(x, flat)

kernel_name = 'gated_mix__grouped_kv_mqa__glu_gated_swiglu__prompt'

def setup_inputs():

    _w = (lambda a: (lambda t: t.to(torch.bfloat16) if t.is_floating_point() else t)(torch.as_tensor(a)))
    def _A_setup():
        B, S, D, H = 1, 2048, 512, 32
        Dh = D // H
        return {
            "x": _w((lambda *s: torch.randn(*s, dtype=torch.bfloat16) * 0.05)(B, S, D)),
            "wq": _w((lambda *s: torch.randn(*s, dtype=torch.bfloat16) * 0.8)(D, H * Dh)),
            "wk": _w((lambda *s: torch.randn(*s, dtype=torch.bfloat16) * 0.8)(D, Dh)),
            "wv": _w((lambda *s: torch.randn(*s, dtype=torch.bfloat16) * 0.05)(D, Dh)),
            "wo": _w((lambda *s: torch.randn(*s, dtype=torch.bfloat16) * 0.05)(H * Dh, D)),
        }
    _A_in = _A_setup()

    def _B_setup():
        B, S, D, F = 1, 2048, 512, 1376
        return {
            "x": _w((lambda *s: torch.randn(*s, dtype=torch.bfloat16) * 0.05)(B, S, D)),
            "w1": _w((lambda *s: torch.randn(*s, dtype=torch.bfloat16) * 0.8)(D, F) * (2.0 / D) ** 0.5),
            "w3": _w((lambda *s: torch.randn(*s, dtype=torch.bfloat16) * 0.8)(D, F) * (2.0 / D) ** 0.5),
            "w2": _w((lambda *s: torch.randn(*s, dtype=torch.bfloat16) * 0.8)(F, D) * (2.0 / F) ** 0.5),
        }
    _B_in = _B_setup()

    return {
        "A_x": _A_in["x"],
        "A_wq": _A_in["wq"],
        "A_wk": _A_in["wk"],
        "A_wv": _A_in["wv"],
        "A_wo": _A_in["wo"],
        "B_x": _B_in["x"],
        "B_w1": _B_in["w1"],
        "B_w3": _B_in["w3"],
        "B_w2": _B_in["w2"],
        "gate_w": _w((lambda *s: torch.randn(*s, dtype=torch.bfloat16) * 0.05)(512) * 16.0),
    }

def reference(A_x, A_wq, A_wk, A_wv, A_wo, B_x, B_w1, B_w3, B_w2, gate_w):
    def _A_ref(x, wq, wk, wv, wo):
        B, S, D = x.shape
        H = 32
        Dh = D // H
        q = (lambda x, *d: x.permute(*d))((x @ wq).reshape(B, S, H, Dh), 0, 2, 1, 3)
        k = x @ wk
        v = x @ wv
        scores = torch.einsum("bhqd,bkd->bhqk", q, k) * (Dh ** -0.5)
        p = _softmax(scores, axis=-1)
        o = torch.einsum("bhqk,bkd->bhqd", p, v)
        return (lambda x, *d: x.permute(*d))(o, 0, 2, 1, 3).reshape(B, S, H * Dh) @ wo

    def _B_ref(x, w1, w3, w2):
        gate = torch.einsum("bsd,df->bsf", x, w1)
        up = torch.einsum("bsd,df->bsf", x, w3)
        h = _silu(gate) * up
        out = torch.einsum("bsf,fd->bsd", h, w2)
        return out

    x = A_x
    g = _sigmoid((x * gate_w).sum(-1, keepdims=True))
    a = _A_ref(x, A_wq, A_wk, A_wv, A_wo)
    b = _B_ref(x, B_w1, B_w3, B_w2)
    return g * a + (1 - g) * b
```

```python
import re

class Asm:
    def __init__(self):
        self.lines = []
        self.vm = []
        self.lg = []
        self.uid = 0
    def __call__(self, s):
        for l in s.split("\n"):
            l = l.strip()
            if l:
                self.lines.append(l if l.endswith(":") else "    " + l)
    def c(self, s):
        self.lines.append("    ; " + s)
    def label(self, s):
        self.lines.append(s + ":")
    def newlabel(self, base):
        self.uid += 1
        return f"{base}_{self.uid}"
    def vmem(self, s, tag=None):
        self(s); self.vm.append(tag)
        assert len(self.vm) <= 63, "vmcnt overflow"
    def lds(self, s, tag=None):
        self(s); self.lg.append(tag)
    def _need(self, q, tags):
        idx = -1
        for i, t in enumerate(q):
            if t in tags: idx = i
        return idx
    def wait(self, vm=(), lg=()):
        parts = []
        if isinstance(vm, (str, tuple)) and not isinstance(vm, list): vm = [vm] if vm != () else []
        if isinstance(lg, (str, tuple)) and not isinstance(lg, list): lg = [lg] if lg != () else []
        i = self._need(self.vm, vm)
        if i >= 0:
            n = len(self.vm) - 1 - i
            parts.append(f"vmcnt({n})"); self.vm = self.vm[i+1:]
        i = self._need(self.lg, lg)
        if i >= 0:
            n = min(len(self.lg) - 1 - i, 15)
            parts.append(f"lgkmcnt({n})"); self.lg = self.lg[len(self.lg)-n:] if n else []
        if parts: self("s_waitcnt " + " ".join(parts))
    def wait_all(self, vm=True, lg=True):
        parts = []
        if vm: parts.append("vmcnt(0)"); self.vm = []
        if lg: parts.append("lgkmcnt(0)"); self.lg = []
        self("s_waitcnt " + " ".join(parts))
    def reset(self):
        self.vm = []; self.lg = []
    def text(self):
        return "\n".join(self.lines) + "\n"

def v(a, n=1):
    return f"v{a}" if n == 1 else f"v[{a}:{a+n-1}]"
def s(a, n=1):
    return f"s{a}" if n == 1 else f"s[{a}:{a+n-1}]"

_reg = re.compile(r"^-?\|?(?:abs\()?([vsa])(?:(\d+)|\[(\d+):(\d+)\])\)?\|?$")
def regs(tok):
    tok = tok.strip()
    if tok == "vcc": return {("s", 106), ("s", 107)}
    if tok == "exec": return {("s", 126), ("s", 127)}
    if tok == "m0": return {("s", 124)}
    m = _reg.match(tok)
    if not m: return set()
    k = m.group(1)
    if m.group(2) is not None: return {(k, int(m.group(2)))}
    return {(k, i) for i in range(int(m.group(3)), int(m.group(4)) + 1)}
TRANS = ("v_exp_", "v_log_", "v_rcp_", "v_rsq_", "v_sqrt_", "v_sin_", "v_cos_")
class I:
    def __init__(self, line, no):
        self.no = no; self.line = line.strip()
        t = self.line.split(";")[0].strip()
        p = t.split(None, 1)
        self.mn = p[0]
        rest = p[1] if len(p) > 1 else ""
        ops = [o.strip() for o in rest.split(",")]
        if ops:
            last = ops[-1].split()
            self.mods = last[1:]
            ops[-1] = last[0] if last else ""
        self.ops = ops
        mn = self.mn
        self.mfma = mn.startswith("v_mfma") or mn.startswith("v_smfmac")
        self.valu = mn.startswith("v_") and not self.mfma
        self.trans = mn.startswith(TRANS)
        self.vmem = mn.startswith(("buffer_", "global_"))
        self.ds = mn.startswith("ds_")
        self.salu = mn.startswith("s_")
        self.w = set(); self.r = set(); self.srcC = set(); self.ab = set(); self.stdata = set()
        R = [regs(o) for o in ops]
        if self.mfma:
            self.passes = 8 if "32x32" in mn else 4
            self.w = R[0]; self.ab = R[1] | R[2]
            if mn.startswith("v_smfmac"):
                self.srcC = R[0]; self.ab |= R[3]
            else:
                self.srcC = R[3]
            self.r = self.ab | self.srcC
        elif self.valu:
            self.w = set(R[0]);
            for x in R[1:]: self.r |= x
            if "swap" in mn: self.w |= R[1]; self.r |= R[0]
            if mn.startswith(("v_fmac", "v_dot2c", "v_writelane")): self.r |= R[0]
            if mn.startswith("v_cmpx"): self.w |= regs("exec")
            if "_co_" in mn: self.w |= R[1]
        elif self.vmem:
            islds = "lds" in self.mods or "_lds_" in mn
            self.islds = islds
            if "load" in mn and not islds:
                self.w = R[0]
                for x in R[1:]: self.r |= x
            else:
                for x in R: self.r |= x
                if "atomic" in mn and "sc0" in self.mods: self.w = R[0]
                if "store" in mn and ("x4" in mn or "x3" in mn):
                    self.stdata = R[0] if mn.startswith("buffer") else R[1]
        elif self.ds:
            if "read" in mn or "rtn" in mn or "permute" in mn or "swizzle" in mn:
                self.w = R[0]
                for x in R[1:]: self.r |= x
            else:
                for x in R: self.r |= x
        elif self.salu:
            if mn.startswith(("s_cmp", "s_cbranch", "s_branch", "s_waitcnt", "s_nop", "s_barrier", "s_sleep", "s_setprio", "s_endpgm", "s_bitcmp")):
                for x in R: self.r |= x
            else:
                self.w = R[0] if R else set()
                for x in R[1:]: self.r |= x
                if "saveexec" in mn: self.w |= regs("exec")
        self.states = 1
        if mn == "s_nop": self.states = int(ops[0], 0) + 1

def need(p, c):
    n = 0
    vw = {x for x in p.w if x[0] in "va"}; sw = {x for x in p.w if x[0] == "s"}
    if p.valu:
        if c.mfma and vw & c.r: n = max(n, 2)
        if c.mfma and regs("exec") & sw: n = max(n, 4)
        if c.mn.startswith(("v_readlane", "v_readfirstlane")) and vw & c.r: n = max(n, 1)
        if "permlane" in c.mn and vw & c.r: n = max(n, 2)
        if c.valu and any(m.startswith(("row_", "quad_", "wave_")) for m in getattr(c, "mods", [])) and vw & c.r: n = max(n, 2)
        if p.trans and c.valu and not c.trans and vw & c.r: n = max(n, 1)
        if c.vmem and sw & c.r: n = max(n, 5)
        if c.valu and sw & c.r: n = max(n, 2)
        if c.valu and c.mn.startswith("v_cndmask") and len(c.ops) == 3 and sw & regs("vcc"): n = max(n, 2)
    if p.mfma:
        big = p.passes == 8
        if c.mfma:
            if p.w & c.ab: n = max(n, 12 if big else 8)
            if p.w & c.srcC and not (p.w == c.srcC and p.passes == c.passes): n = max(n, 10 if big else 6)
        elif (c.valu or c.vmem or c.ds) and p.w & (c.r | c.w): n = max(n, 12 if big else 8)
        if c.valu and p.srcC & c.w: n = max(n, 7 if big else 3)
    if p.vmem and p.stdata and (p.stdata & c.w): n = max(n, 2 if c.valu else 1)
    if p.salu and ("s", 124) in p.w and c.vmem and getattr(c, "islds", False): n = max(n, 1)
    return n

def check_hazards(text, window=24):
    ins = []; labels = {}
    for no, l in enumerate(text.split("\n"), 1):
        t = l.split(";")[0].strip()
        if not t or t.startswith("."): continue
        if t.endswith(":"): labels[t[:-1]] = len(ins); continue
        ins.append(I(l, no))
    succ = []
    for i, x in enumerate(ins):
        if x.mn == "s_endpgm": succ.append([])
        elif x.mn == "s_branch": succ.append([labels[x.ops[0]]])
        elif x.mn.startswith("s_cbranch"): succ.append([labels[x.ops[0]], i + 1])
        else: succ.append([i + 1])
    errs = set()
    for i, p in enumerate(ins):
        if not (p.valu or p.mfma or p.stdata or (p.salu and ("s", 124) in p.w)): continue
        stack = [(j, 0) for j in succ[i]]; seen = {}
        while stack:
            j, d = stack.pop()
            if j >= len(ins) or d >= 13: continue
            if seen.get(j, 99) <= d: continue
            seen[j] = d
            c = ins[j]
            n = need(p, c)
            if n > d: errs.add((p.no, c.no, n, d, p.line, c.line))
            for k in succ[j]: stack.append((k, d + c.states))
    return sorted(errs)
```

```python
import sys, struct, math
from asmlib import Asm, v, s, check_hazards

NAME = "gated_mix__grouped_kv_mqa__glu_gated_swiglu__prompt"
def f32(x): return "0x%08x" % struct.unpack("<I", struct.pack("<f", x))[0]

DEFAULT = dict(STAMP=0, MAP="tok", FORCE_SLOW=0, LO=-40, HI=60, SPIN=200000)

Q_, OS_, GW_, G_, G1_, CA_, CB_, X_, RING_ = 0, 8192, 28672, 29696, 29952, 30208, 30464, 32768, 98304
LDS_BYTES = 163840
SLOT, W3OFF = 6400, 3200
FKV, FH, KV, OBUF, HBUF, STAMPS = 0x1000, 0x2000, 0x10000, 0x100000, 0x400000, 0xA00000
HSTRIDE = 0x2C000
WS_BYTES = 0xB00000
IDX = 0xDDDDDDDD
pX, pWQ, pWK, pWV, pWO, pW1, pW3, pW2, pGW, pOUT, pDBG, pWS = 4, 6, 8, 10, 12, 16, 18, 20, 22, 24, 26, 28
sTAG, sSPIN = 30, 31
rX, rA, rB, rWS, rH, rW2, rWO, rOUT, rDBG = 32, 36, 40, 44, 48, 52, 56, 60, 64
sTG, sCG, sROT, sW, sWV = 68, 69, 70, 71, 72
t0, t1, t2, t3, t4, t5 = 73, 74, 75, 76, 77, 78
sC0 = 96
sKV = 80
VST = 11

def srd(a, r, p, nbytes, off=None):
    if off is None:
        a(f"s_mov_b32 {s(r)}, {s(p)}\ns_mov_b32 {s(r+1)}, {s(p+1)}")
    else:
        a(f"s_add_u32 {s(r)}, {s(p)}, {off}\ns_addc_u32 {s(r+1)}, {s(p+1)}, 0")
    a(f"s_mov_b32 {s(r+2)}, {nbytes}\ns_mov_b32 {s(r+3)}, 0x20000")

def gen(**kw):
    P = dict(DEFAULT); P.update(kw)
    a = Asm()
    def stamp(k):
        if P["STAMP"]:
            a("s_memrealtime s[100:101]"); a.wait_all(vm=False)
            a(f"v_writelane_b32 v{VST}, s100, {k}")
    def stamp_out():
        if P["STAMP"]:
            a(f"s_lshl_b32 {s(t0)}, s2, 3\ns_add_u32 {s(t0)}, {s(t0)}, {s(sWV)}\ns_lshl_b32 {s(t0)}, {s(t0)}, 8\ns_add_u32 {s(t0)}, {s(t0)}, {STAMPS}")
            a(f"v_lshlrev_b32 v8, 2, v0\nbuffer_store_dword v{VST}, v8, {s(rWS,4)}, {s(t0)} offen")
    def dma(voff, r, soff, tag, flags=""):
        a.vmem(f"buffer_load_dwordx4 {v(voff)}, {s(r,4)}, {soff} offen lds {flags}".strip(), tag)
    def spin_init(): a(f"s_mov_b32 {s(sSPIN)}, {P['SPIN']}")
    def spin_back(lbl, sleep=None):
        out = a.newlabel("L_ok")
        a(f"s_cbranch_vccz {out}")
        if sleep: a(f"s_sleep {sleep}")
        a(f"s_sub_u32 {s(sSPIN)}, {s(sSPIN)}, 1\ns_cmp_lg_u32 {s(sSPIN)}, 0\ns_cbranch_scc1 {lbl}")
        a.label(out)
    def lds_wait(addr, off, count, tmp, sleep=None):
        lbl = a.newlabel("L_lw"); spin_init(); a.label(lbl)
        a(f"ds_read_b32 {v(tmp)}, {v(addr)} offset:{off}"); a.wait_all(vm=False)
        a(f"v_cmp_ne_u32 vcc, {hex((IDX*count) & 0xffffffff)}, {v(tmp)}")
        spin_back(lbl, sleep)

    a("s_cmp_ge_u32 s2, 256\ns_cbranch_scc1 L_end")
    a("s_load_dwordx16 s[4:19], s[0:1], 0\ns_load_dwordx8 s[20:27], s[0:1], 64\ns_load_dwordx2 s[28:29], s[0:1], 96")
    a(f"v_lshrrev_b32 v1, 6, v0\nv_and_b32 v0, 63, v0\nv_readfirstlane_b32 {s(sWV)}, v1")
    if P["MAP"] == "tok":
        a(f"s_and_b32 {s(sTG)}, s2, 31\ns_lshr_b32 {s(t0)}, s2, 5\ns_sub_u32 {s(sCG)}, 7, {s(t0)}")
        a(f"s_lshr_b32 {s(t0)}, {s(sTG)}, 3\ns_lshl_b32 {s(t0)}, {s(t0)}, 1\ns_add_u32 {s(sROT)}, {s(t0)}, {s(sTG)}\ns_and_b32 {s(sROT)}, {s(sROT)}, 7")
    elif P["MAP"] == "col":
        a(f"s_and_b32 {s(sCG)}, s2, 7\ns_lshr_b32 {s(sTG)}, s2, 3\ns_and_b32 {s(sROT)}, {s(sTG)}, 7")
    elif P["MAP"] == "4x2":
        a(f"s_lshr_b32 {s(t0)}, s2, 6\ns_sub_u32 {s(t0)}, 3, {s(t0)}\ns_and_b32 {s(t1)}, s2, 4\ns_add_u32 {s(sCG)}, {s(t0)}, {s(t1)}")
        a(f"s_lshr_b32 {s(t0)}, s2, 3\ns_and_b32 {s(sROT)}, {s(t0)}, 7\ns_lshl_b32 {s(t0)}, {s(sROT)}, 2\ns_and_b32 {s(t1)}, s2, 3\ns_add_u32 {s(sTG)}, {s(t0)}, {s(t1)}")
    elif P["MAP"] == "2x4":
        a(f"s_lshr_b32 {s(t0)}, s2, 7\ns_sub_u32 {s(t0)}, 1, {s(t0)}\ns_and_b32 {s(t1)}, s2, 6\ns_add_u32 {s(sCG)}, {s(t0)}, {s(t1)}")
        a(f"s_lshr_b32 {s(t0)}, s2, 3\ns_and_b32 {s(sROT)}, {s(t0)}, 7\ns_and_b32 {s(t0)}, {s(t0)}, 15\ns_lshl_b32 {s(t0)}, {s(t0)}, 1\ns_and_b32 {s(t1)}, s2, 1\ns_add_u32 {s(sTG)}, {s(t0)}, {s(t1)}")
    a(f"s_and_b32 {s(sW)}, {s(sWV)}, 3")
    a.c("X tile DMA offsets: lane -> row lane>>3, slot lane&7 holds chunk slot ^ ((token>>1)&7)")
    a("v_lshrrev_b32 v2, 3, v0\nv_and_b32 v3, 7, v0\nv_lshrrev_b32 v4, 4, v0\nv_xor_b32 v3, v3, v4")
    a("v_lshlrev_b32 v3, 4, v3\nv_lshl_add_u32 v2, v2, 10, v3\nv_xor_b32 v3, 64, v2")
    a(f"s_add_u32 {s(t0)}, {s(sWV)}, {s(sROT)}\ns_and_b32 {s(t0)}, {s(t0)}, 7\ns_lshl_b32 {s(t0)}, {s(t0)}, 7")
    a(f"s_lshl_b32 {s(t1)}, {s(sTG)}, 16\ns_add_u32 {s(t0)}, {s(t0)}, {s(t1)}")
    a(f"s_and_b32 {s(t2)}, {s(sCG)}, 1\ns_lshl_b32 {s(t1)}, {s(t2)}, 15\ns_add_u32 {s(t0)}, {s(t0)}, {s(t1)}")
    a(f"s_lshl_b32 {s(t1)}, {s(sWV)}, 13\ns_lshl_b32 {s(t2)}, {s(t2)}, 12\ns_add_u32 {s(t1)}, {s(t1)}, {s(t2)}\ns_add_u32 {s(t1)}, {s(t1)}, {X_}")
    a(f"s_lshl_b32 {s(t2)}, {s(sROT)}, 3\nv_add_u32 v4, {s(t2)}, v0\nv_and_b32 v4, 63, v4\nv_lshlrev_b32 v4, 4, v4")
    a(f"v_lshlrev_b32 v5, 2, v0\nv_mov_b32 v6, 0")
    if P["STAMP"]: a(f"v_mov_b32 v{VST}, 0")
    stamp(0)
    a("s_waitcnt lgkmcnt(0)")
    a(f"s_load_dword {s(sTAG)}, {s(pWS,2)}, 0")
    srd(a, rX, pX, 2048*1024)
    a(f"s_cmp_lg_u32 {s(sWV)}, 0\ns_cbranch_scc1 L_nogw")
    srd(a, rB, pGW, 1024)
    a(f"s_mov_b32 m0, {GW_}\ns_nop 0")
    a(f"buffer_load_dwordx4 v4, {s(rB,4)}, 0 offen lds")
    a.label("L_nogw")
    for j in range(8):
        if j == 4: a(f"s_xor_b32 {s(t0)}, {s(t0)}, 0x8000\ns_xor_b32 {s(t1)}, {s(t1)}, 0x1000")
        a(f"s_add_u32 m0, {s(t1)}, {(j&3)*1024}\ns_add_u32 {s(t2)}, {s(t0)}, {(j&3)*8192}")
        dma(2 + (j & 1), rX, s(t2), "x")
    a(f"ds_write_b32 v5, v6 offset:{CA_}\nds_write_b32 v5, v6 offset:{CB_}")
    srd(a, rWS, pWS, WS_BYTES)
    a(f"s_cmp_ge_u32 {s(sWV)}, 4\ns_cbranch_scc1 L_B")

    def tag_from_epoch():
        a(f"s_mul_i32 {s(sTAG)}, {s(sTAG)}, 0x9E3779B1\ns_add_u32 {s(sTAG)}, {s(sTAG)}, 0x7F4A7C15")

    def x16_addr(dst, tmp):
        a.c("x fragment address (16x16x32 operand): n*128 + ((G ^ (n>>1))*16)")
        a(f"v_and_b32 {v(tmp)}, 15, v0\nv_lshrrev_b32 {v(dst)}, 1, {v(tmp)}\nv_lshrrev_b32 {v(tmp+1)}, 4, v0\nv_xor_b32 {v(dst)}, {v(dst)}, {v(tmp+1)}")
        a(f"v_lshlrev_b32 {v(dst)}, 4, {v(dst)}\nv_lshl_add_u32 {v(dst)}, {v(tmp)}, 7, {v(dst)}")
    def narrow_src(dst, tmp, shift):
        a.c("32-byte-row DMA source: slot rho=lane>>1 holds row rho ^ (4*((rho>>3)&1))")
        a(f"v_lshrrev_b32 {v(dst)}, 1, v0\nv_lshrrev_b32 {v(tmp)}, 2, v0\nv_and_b32 {v(tmp)}, 4, {v(tmp)}\nv_xor_b32 {v(dst)}, {v(dst)}, {v(tmp)}")
        a(f"v_and_b32 {v(tmp)}, 1, v0\nv_lshlrev_b32 {v(tmp)}, 4, {v(tmp)}\nv_lshl_add_u32 {v(dst)}, {v(dst)}, {shift}, {v(tmp)}")
    def narrow_tr(dst, tmp):
        a.c("transpose-read address in a 32-byte-row image: ((8G+r) ^ (4*(G&1)))*32 + c*8")
        a(f"v_lshrrev_b32 {v(tmp)}, 4, v0\nv_lshlrev_b32 {v(dst)}, 8, {v(tmp)}\nv_and_b32 {v(tmp)}, 1, {v(tmp)}\nv_lshl_add_u32 {v(dst)}, {v(tmp)}, 7, {v(dst)}")
        a(f"v_and_b32 {v(tmp)}, 15, v0\nv_lshl_add_u32 {v(dst)}, {v(tmp)}, 3, {v(dst)}")

    def finalize(T, gaddr, vst, sst, tmp, slow_lbl, back_lbl):
        lo = (127 + P["LO"]) << 23; hi = (127 + P["HI"]) << 23
        a(f"v_subrev_u32 {v(tmp+1)}, {hex(lo)}, {v(T+8)}")
        a(f"v_cmp_le_u32 vcc, {hex(0 if P['FORCE_SLOW'] else hi-lo)}, {v(tmp+1)}")
        a(f"s_cbranch_vccnz {slow_lbl}")
        a.label(back_lbl)
        a(f"v_rcp_f32 {v(tmp+1)}, {v(T+8)}\ns_nop 0\nv_mul_f32 {v(tmp)}, {v(tmp)}, {v(tmp+1)}")
        for i in range(8): a(f"v_mul_f32 {v(T+i)}, {v(T+i)}, {v(tmp)}")
        for i in range(4): a(f"v_cvt_pk_bf16_f32 {v(T+i)}, {v(T+2*i)}, {v(T+2*i+1)}")
        a(f"v_min_u32 {v(T)}, -2, {v(T)}")
        a(f"buffer_store_dwordx4 {v(T,4)}, {v(vst)}, {s(rWS,4)}, {s(sst)} offen sc1")

    def slow_path(lbl, back, T, qaddr, R):
        Qf, Kf, V0, V1, S, M, vk, vv, idx, tm = R, R+4, R+8, R+12, R+16, R+32, R+33, R+34, R+35, R+36
        a.label(lbl)
        a(f"ds_read_b128 {v(Qf,4)}, {v(qaddr)} offset:{Q_}")
        a(f"v_lshlrev_b32 {v(vk)}, 4, v0\nv_lshrrev_b32 {v(vv)}, 5, v0\nv_lshlrev_b32 {v(vv)}, 8, {v(vv)}")
        a(f"v_and_b32 {v(tm)}, 15, v0\nv_lshl_add_u32 {v(vv)}, {v(tm)}, 4, {v(vv)}")
        a(f"v_mov_b32 {v(idx)}, {hex(IDX)}\nv_mov_b32 {v(M)}, 0xff800000")
        for i in range(8): a(f"v_mov_b32 {v(V0+i)}, 0x3f803f80")
        for i in range(16): a(f"v_mov_b32 {v(T+i)}, 0")
        a(f"s_mov_b32 {s(t4)}, {KV}")
        l1 = a.newlabel("L_sm"); a.label(l1)
        a(f"buffer_load_dwordx4 {v(Kf,4)}, {v(vk)}, {s(rWS,4)}, {s(t4)} offen sc1\ns_waitcnt vmcnt(0) lgkmcnt(0)")
        a(f"v_mfma_f32_32x32x16_bf16 {v(S,16)}, {v(Kf,4)}, {v(Qf,4)}, 0\ns_nop 15")
        for i in range(8): a(f"v_max3_f32 {v(M)}, {v(M)}, {v(S+2*i)}, {v(S+2*i+1)}")
        a(f"s_add_u32 {s(t4)}, {s(t4)}, 2048\ns_cmp_lt_u32 {s(t4)}, {KV+64*2048}\ns_cbranch_scc1 {l1}")
        a(f"v_mov_b32 {v(tm)}, {v(M)}\ns_nop 1\nv_permlane32_swap_b32 {v(tm)}, {v(M)}\ns_nop 1\nv_max_f32 {v(M)}, {v(M)}, {v(tm)}")
        a(f"s_mov_b32 {s(t4)}, {KV}")
        l2 = a.newlabel("L_sp"); a.label(l2)
        a(f"buffer_load_dwordx4 {v(Kf,4)}, {v(vk)}, {s(rWS,4)}, {s(t4)} offen sc1")
        a("s_mov_b32 exec_lo, 0xffff\ns_mov_b32 exec_hi, 0xffff")
        a(f"buffer_load_dwordx4 {v(V0,4)}, {v(vv)}, {s(rWS,4)}, {s(t4)} offen offset:1024 sc1")
        a(f"buffer_load_dwordx4 {v(V1,4)}, {v(vv)}, {s(rWS,4)}, {s(t4)} offen offset:1536 sc1")
        a("s_mov_b64 exec, -1\ns_waitcnt vmcnt(0)")
        a(f"v_mfma_f32_32x32x16_bf16 {v(S,16)}, {v(Kf,4)}, {v(Qf,4)}, 0\ns_nop 15")
        for i in range(16): a(f"v_sub_f32 {v(S+i)}, {v(S+i)}, {v(M)}")
        for i in range(16): a(f"v_exp_f32 {v(S+i)}, {v(S+i)}")
        a("s_nop 1")
        a(f"v_smfmac_f32_32x32x32_bf16 {v(T,16)}, {v(V0,4)}, {v(S,8)}, {v(idx)}")
        a(f"v_smfmac_f32_32x32x32_bf16 {v(T,16)}, {v(V1,4)}, {v(S+8,8)}, {v(idx)}")
        a(f"s_add_u32 {s(t4)}, {s(t4)}, 2048\ns_cmp_lt_u32 {s(t4)}, {KV+64*2048}\ns_cbranch_scc1 {l2}")
        a(f"s_nop 15\ns_branch {back}")

    def obuf_voff(dst, tmp):
        a(f"v_and_b32 {v(dst)}, 15, v0\nv_lshlrev_b32 {v(dst)}, 4, {v(dst)}\nv_lshrrev_b32 {v(tmp)}, 5, v0\nv_lshl_add_u32 {v(dst)}, {v(tmp)}, 8, {v(dst)}")
        a(f"v_and_b32 {v(tmp)}, 16, v0\nv_lshl_add_u32 {v(dst)}, {v(tmp)}, 10, {v(dst)}")
    def obuf_soff(dst, n_sgpr, ta):
        a(f"s_lshl_b32 {s(dst)}, {s(sTG)}, 16\ns_lshl_b32 {s(ta)}, {s(sCG)}, 11\ns_add_u32 {s(dst)}, {s(dst)}, {s(ta)}\ns_add_u32 {s(dst)}, {s(dst)}, {OBUF}")
        a(f"s_and_b32 {s(ta)}, {s(n_sgpr)}, 2\ns_lshl_b32 {s(ta)}, {s(ta)}, 14\ns_add_u32 {s(dst)}, {s(dst)}, {s(ta)}")
        a(f"s_and_b32 {s(ta)}, {s(n_sgpr)}, 1\ns_lshl_b32 {s(ta)}, {s(ta)}, 10\ns_add_u32 {s(dst)}, {s(dst)}, {s(ta)}")
        a(f"s_and_b32 {s(ta)}, {s(n_sgpr)}, 4\ns_lshl_b32 {s(ta)}, {s(ta)}, 7\ns_add_u32 {s(dst)}, {s(dst)}, {s(ta)}")

    a.c("---------------- A waves")
    srd(a, rA, pWQ, 512*1024)
    vWq, vT, vXa, vGa = 1, 2, 16, 24
    narrow_src(vWq, 8, 10)
    a(f"s_lshl_b32 {s(t0)}, {s(sCG)}, 7\ns_lshl_b32 {s(t1)}, {s(sW)}, 5\ns_add_u32 {s(t0)}, {s(t0)}, {s(t1)}\nv_add_u32 {v(vWq)}, {s(t0)}, {v(vWq)}")
    a(f"s_mul_i32 {s(t4)}, {s(sW)}, 5120\ns_add_u32 {s(t4)}, {s(t4)}, {OS_}")
    a(f"s_lshl_b32 {s(t5)}, {s(sW)}, 14\ns_add_u32 {s(t5)}, {s(t5)}, {RING_+2*SLOT}")
    a(f"s_lshl_b32 {s(t3)}, {s(sROT)}, 16")
    def wq_issue(ks):
        i = ks & 7
        a(f"s_add_u32 m0, {s(t4 if i < 5 else t5)}, {(i if i < 5 else i-5)*1024}")
        a(f"s_and_b32 {s(t2)}, {s(t3)}, 0x7ffff")
        dma(vWq, rA, s(t2), ("wq", ks))
        a(f"s_add_u32 {s(t3)}, {s(t3)}, 0x8000")
    a(f"s_cmp_lg_u32 {s(sCG)}, 7\ns_cbranch_scc1 L_A1\ns_waitcnt vmcnt(0) lgkmcnt(0)\ns_barrier")
    a.label("L_A1")
    for ks in range(8): wq_issue(ks)
    narrow_tr(8, 9)
    a(f"v_add_u32 {v(vT)}, {s(t4)}, v8\nv_add_u32 {v(vT+2)}, {s(t5)}, v8\nv_xor_b32 {v(vT+1)}, 128, {v(vT)}\nv_xor_b32 {v(vT+3)}, 128, {v(vT+2)}")
    x16_addr(8, 9)
    for js in range(4):
        a(f"s_xor_b32 {s(t0)}, {s(sW)}, {js}\ns_lshl_b32 {s(t0)}, {s(t0)}, 11\ns_add_u32 {s(t0)}, {s(t0)}, {X_}")
        a(f"v_add_u32 {v(vXa+2*js)}, {s(t0)}, v8\nv_xor_b32 {v(vXa+2*js+1)}, 64, {v(vXa+2*js)}")
    a(f"v_and_b32 {v(vGa)}, 48, v0")
    a(f"s_cmp_eq_u32 {s(sCG)}, 7\ns_cbranch_scc1 L_A2\ns_waitcnt vmcnt(8) lgkmcnt(0)\ns_barrier")
    a.label("L_A2")
    a.vm = [("wq", k) for k in range(8)]; a.lg = []
    tag_from_epoch()
    stamp(1)
    WQ, XF, ACC = 64, 128, 32
    def wq_pull(ks):
        i = ks & 7
        a.wait(vm=("wq", ks))
        b, o = (vT, i*1024) if i < 5 else (vT+2, (i-5)*1024)
        a.lds(f"ds_read_b64_tr_b16 {v(WQ+4*ks,2)}, {v(b)} offset:{o}", ("w", ks))
        a.lds(f"ds_read_b64_tr_b16 {v(WQ+4*ks+2,2)}, {v(b+1)} offset:{o}", ("w", ks))
    def xq_read(ks):
        st = XF + 20*(ks % 3)
        for js in range(4):
            a.lds(f"ds_read_b128 {v(st+4*js,4)}, {v(vXa+2*js+(ks&1))} offset:{(ks>>1)*8192}", ("x", ks))
        a.lds(f"ds_read_b128 {v(st+16,4)}, {v(vGa)} offset:{GW_+ks*64}", ("x", ks))
    def q_mfma(ks):
        st = XF + 20*(ks % 3)
        a.wait(lg=[("x", ks), ("w", ks)])
        for js in range(4):
            a(f"v_mfma_f32_16x16x32_bf16 {v(ACC+4*js,4)}, {v(WQ+4*ks,4)}, {v(st+4*js,4)}, {v(ACC+4*js,4) if ks else 0}")
        a(f"v_mfma_f32_16x16x32_bf16 {v(ACC+16,4)}, {v(st+16,4)}, {v(st,4)}, {v(ACC+16,4) if ks else 0}")
    for ks in range(8): wq_pull(ks)
    xq_read(0)
    a.wait(lg=("w", 7))
    for ks in range(8, 16): wq_issue(ks)
    xq_read(1)
    for ks in range(16):
        if ks + 2 < 16:
            if ks + 2 >= 8: wq_pull(ks + 2)
            xq_read(ks + 2)
        q_mfma(ks)
    stamp(2)
    a.c("q epilogue: scale, pack, write fragments; zero own O slots; gate")
    a(f"v_mov_b32 v12, 0\nv_mov_b32 v13, 0\nv_mov_b32 v14, 0\nv_mov_b32 v15, 0\nv_lshl_add_u32 v8, v0, 4, {s(t4)}")
    for i in range(5): a(f"ds_write_b128 v8, v[12:15] offset:{i*1024}")
    a.c("Q address: n_pos*1024 + (16*(js&1) + n + 32*(g>>1))*16 + 8*(g&1),  n_pos = 4*(w&1) + 2*(js>>1) + (w>>1)")
    a("v_and_b32 v8, 15, v0\nv_lshlrev_b32 v8, 4, v8\nv_and_b32 v9, 32, v0\nv_lshl_add_u32 v8, v9, 4, v8\nv_and_b32 v9, 16, v0\nv_lshrrev_b32 v9, 1, v9\nv_add_u32 v8, v8, v9")
    a(f"s_and_b32 {s(t0)}, {s(sW)}, 1\ns_lshl_b32 {s(t1)}, {s(t0)}, 12\ns_lshl_b32 {s(t0)}, {s(t0)}, 8\ns_add_u32 {s(t0)}, {s(t0)}, {s(t1)}")
    a(f"s_lshr_b32 {s(t1)}, {s(sW)}, 1\ns_mul_i32 {s(t1)}, {s(t1)}, 3072\ns_add_u32 {s(t0)}, {s(t0)}, {s(t1)}\nv_add_u32 v8, {s(t0)}, v8")
    cq = 0.25 * math.log2(math.e)
    for i in range(16): a(f"v_mul_f32 {v(ACC+i)}, {f32(cq)}, {v(ACC+i)}")
    for js in range(4):
        a(f"v_cvt_pk_bf16_f32 {v(ACC+4*js)}, {v(ACC+4*js)}, {v(ACC+4*js+1)}\nv_cvt_pk_bf16_f32 {v(ACC+4*js+1)}, {v(ACC+4*js+2)}, {v(ACC+4*js+3)}")
        a(f"v_xor_b32 v9, {(js&1)*256 + (js>>1)*2048}, v8\nds_write_b64 v9, {v(ACC+4*js,2)} offset:{Q_}")
    z = ACC + 16
    a(f"v_cvt_pk_bf16_f32 {v(z)}, {v(z)}, {v(z)}\nv_and_b32 {v(z)}, 0xffff0000, {v(z)}")
    a(f"v_mul_f32 {v(z)}, {f32(-math.log2(math.e))}, {v(z)}\nv_exp_f32 {v(z)}, {v(z)}\ns_nop 0\nv_add_f32 {v(z)}, 1.0, {v(z)}\nv_rcp_f32 {v(z)}, {v(z)}\ns_nop 0")
    a(f"v_cvt_pk_bf16_f32 {v(z)}, {v(z)}, {v(z)}\nv_and_b32 {v(z)}, 0xffff0000, {v(z)}\nv_sub_f32 {v(z+1)}, 1.0, {v(z)}")
    a(f"v_cvt_pk_bf16_f32 {v(z+1)}, {v(z+1)}, {v(z+1)}\nv_and_b32 {v(z+1)}, 0xffff0000, {v(z+1)}")
    a(f"s_lshl_b32 {s(t0)}, {s(sW)}, 6\nv_and_b32 v9, 15, v0\nv_lshl_add_u32 v9, v9, 2, {s(t0)}")
    a(f"ds_write_b32 v9, {v(z)} offset:{G_}\nds_write_b32 v9, {v(z+1)} offset:{G1_}")
    vIDX, vQa, vOa, vKo, vVo, vZ, QF, S0, S1, O, KR, VR = 1, 2, 3, 4, 5, 6, 12, 16, 32, 48, 64, 128
    a(f"v_mov_b32 {v(vIDX)}, {hex(IDX)}\nv_lshlrev_b32 v10, 2, v0")
    a(f"ds_add_u32 v10, {v(vIDX)} offset:{CA_}")
    a.c("attention setup")
    for i in range(128): a(f"v_mov_b32 {v(VR+i)}, {'0x3f803f80' if i == 0 else v(VR)}")
    a(f"v_mov_b32 {v(vZ)}, 0\nv_mov_b32 {v(vZ+1)}, 0")
    a(f"s_lshl_b32 {s(t0)}, {s(sW)}, 11\nv_lshlrev_b32 {v(vKo)}, 4, v0\nv_add_u32 {v(vQa)}, {s(t0)}, {v(vKo)}")
    a(f"v_and_b32 v8, 15, v0\nv_lshlrev_b32 v8, 4, v8\nv_lshrrev_b32 {v(vVo)}, 5, v0\nv_lshl_add_u32 {v(vVo)}, {v(vVo)}, 8, v8")
    a(f"v_mfma_f32_32x32x8bf16_1k {v(O,16)}, {v(vZ,2)}, {v(vZ,2)}, 0")
    a.c("key tile order rotated per workgroup")
    a(f"s_lshr_b32 {s(t0)}, s2, 3\ns_lshl_b32 {s(t1)}, {s(sW)}, 15\ns_add_u32 {s(t1)}, {s(t1)}, {KV}")
    for i in range(16):
        a(f"s_add_u32 {s(t2)}, {s(t0)}, {i}\ns_and_b32 {s(t2)}, {s(t2)}, 15\ns_lshl_b32 {s(t2)}, {s(t2)}, 11\ns_add_u32 {s(sKV+i)}, {s(t1)}, {s(t2)}")
    a(f"v_lshrrev_b32 v8, 2, v0\nv_and_b32 v8, 7, v8\nv_and_b32 v9, 3, v0\nv_lshlrev_b32 v9, 2, v9\nv_lshl_add_u32 v8, v8, 7, v9")
    a(f"s_lshl_b32 {s(t3)}, {s(sW)}, 10\ns_add_u32 {s(t3)}, {s(t3)}, {FKV}")
    a(f"s_mov_b32 {s(sC0)}, 0xffff\ns_mov_b32 {s(sC0+1)}, 0xffff")
    lds_wait(10, CA_, 4, 9)
    a(f"ds_read_b128 {v(QF,4)}, {v(vQa)} offset:{Q_}")
    stamp(3)
    spin_init(); a.label("L_kvpoll")
    a(f"buffer_load_dword v9, v8, {s(rWS,4)}, {s(t3)} offen sc1\ns_waitcnt vmcnt(0) lgkmcnt(0)")
    a(f"v_cmp_ne_u32 vcc, {s(sTAG)}, v9")
    spin_back("L_kvpoll", 1)
    a.reset()
    stamp(4)
    a("s_setprio 1")
    def kv_load(i):
        a.vmem(f"buffer_load_dwordx4 {v(KR+4*i,4)}, {v(vKo)}, {s(rWS,4)}, {s(sKV+i)} offen sc1", ("k", i))
        a(f"s_mov_b64 exec, {s(sC0,2)}")
        a.vmem(f"buffer_load_dwordx4 {v(VR+8*i,4)}, {v(vVo)}, {s(rWS,4)}, {s(sKV+i)} offen offset:1024 sc1", ("v", i))
        a.vmem(f"buffer_load_dwordx4 {v(VR+8*i+4,4)}, {v(vVo)}, {s(rWS,4)}, {s(sKV+i)} offen offset:1536 sc1", ("v", i))
        a("s_mov_b64 exec, -1")
    PRE = P.get("PRE", 5)
    for i in range(PRE): kv_load(i)
    QK = lambda dst, i: f"v_mfma_f32_32x32x16_bf16 {v(dst,16)}, {v(KR+4*i,4)}, {v(QF,4)}, 0"
    PV0 = lambda src, i: f"v_smfmac_f32_32x32x32_bf16 {v(O,16)}, {v(VR+8*i,4)}, {v(src,8)}, {v(vIDX)}"
    PV1 = lambda src, i: f"v_smfmac_f32_32x32x32_bf16 {v(O,16)}, {v(VR+8*i+4,4)}, {v(src+8,8)}, {v(vIDX)}"
    def flush():
        for r in range(9): a(f"ds_add_f32 {v(vOa)}, {v(O+r)} offset:{OS_+r*2048}")
        a(f"ds_add_u32 {v(vOa)}, {v(vIDX)} offset:{OS_+9*2048}")
    def stage(first):
        for i in range(16):
            cur, oth = (S0, S1) if i % 2 == 0 else (S1, S0)
            ev = {}
            def at(k, f): ev.setdefault(k, []).append(f)
            bnd0 = (i == 0 and not first); bnd1 = (i == 1 and not first)
            p1, pq, p0 = (3, 6, 11) if bnd1 else (2, 5, 10)
            if not (first and i == 0): at(p1, lambda: a(PV1(oth, (i-1) % 16)))
            if first and i + 1 < 16: at(pq, lambda: a.wait(vm=("k", i+1)))
            if first and i == 15: at(pq, lambda: a.wait(vm=("v", 15)))
            if i == 15: at(pq, lambda: a("s_waitcnt lgkmcnt(0)"))
            at(pq, lambda: a(QK(oth, (i+1) % 16)))
            if bnd0:
                at(13, flush)
                at(13, lambda: a(f"v_mfma_f32_32x32x8bf16_1k {v(O,16)}, {v(vZ,2)}, {v(vZ,2)}, 0"))
                at(16, lambda: a(PV0(cur, i)))
            else:
                at(p0, lambda: a(PV0(cur, i)))
            if bnd1: at(13, lambda: a(f"s_sub_u32 {s(t0)}, {s(t0)}, 1"))
            if i == 14:
                at(6, lambda: a(f"v_lshrrev_b32 {v(vOa)}, 2, {v(vQa)}\nv_add_u32 {v(vQa)}, 1024, {v(vQa)}\nv_and_b32 {v(vQa)}, 0x1fff, {v(vQa)}"))
                at(6, lambda: a(f"ds_read_b128 {v(QF,4)}, {v(vQa)} offset:{Q_}"))
            if first and i + PRE < 16: at(12, lambda: kv_load(i + PRE))
            for k in range(17):
                for f in ev.get(k, []): f()
                if k < 16: a(f"v_exp_f32 {v(cur+k)}, {v(cur+k)}")
    a.wait(vm=("k", 0))
    a(QK(S0, 0)); a(f"s_mov_b32 {s(t0)}, 7\ns_nop 10")
    stage(True)
    stamp(5)
    a(".p2align 3")
    a.label("L_stage")
    stage(False)
    a(f"s_cmp_lg_u32 {s(t0)}, 0\ns_cbranch_scc1 L_stage")
    a(PV1(S1, 15))
    stamp(6)
    a.c("last tile of this wave: position (7 + 2w) & 7")
    a(f"s_lshl_b32 {s(t0)}, {s(sW)}, 1\ns_add_u32 {s(t0)}, {s(t0)}, 7\ns_and_b32 {s(t0)}, {s(t0)}, 7")
    obuf_soff(t1, t0, t2)
    obuf_voff(8, 9)
    a(f"s_and_b32 {s(t0)}, {s(t0)}, 2\ns_lshl_b32 {s(t0)}, {s(t0)}, 6\nv_and_b32 v9, 31, v0\nv_lshl_add_u32 v9, v9, 2, {s(t0)}")
    flush()
    a(f"ds_read_b32 v64, v9 offset:{G_}")
    spin_init(); a.label("L_afin")
    a(f"ds_read_b32 v10, {v(vOa)} offset:{OS_+9*2048}")
    for r in range(0, 8, 2): a(f"ds_read2st64_b32 {v(O+r,2)}, {v(vOa)} offset0:{(OS_+r*2048)//256} offset1:{(OS_+(r+1)*2048)//256}")
    a(f"ds_read_b32 {v(O+8)}, {v(vOa)} offset:{OS_+8*2048}\ns_waitcnt lgkmcnt(0)")
    a(f"v_cmp_ne_u32 vcc, {hex((IDX*5) & 0xffffffff)}, v10")
    spin_back("L_afin")
    a(f"v_lshlrev_b32 {v(vQa)}, 2, {v(vOa)}")
    finalize(O, None, 8, t1, 64, "L_slowA", "L_backA")
    a("s_barrier")
    stamp(7); stamp_out()
    a("s_endpgm")

    a.label("L_B")
    a.reset()
    vW, vTr, vXb, vL16, vL4 = 1, 4, 5, 9, 10
    ACC, WF, XB = 16, 112, 160
    sRING, sBLK, sOOB = 80, 81, 82
    a(f"s_lshl_b32 {s(sRING)}, {s(sW)}, 14\ns_add_u32 {s(sRING)}, {s(sRING)}, {RING_}")
    a(f"s_cmp_lg_u32 {s(sCG)}, 7\ns_cbranch_scc1 L_B1")
    a.c("producer: stage wk / wv (k-steps 0..11 in rings 1 / 2, 12..15 in ring 3)")
    srd(a, rW2, pWK, 16384); srd(a, rWO, pWV, 16384)
    narrow_src(12, 13, 5)
    a(f"s_lshl_b32 {s(t0)}, {s(sW)}, 12\ns_add_u32 {s(t1)}, {s(t0)}, {RING_+16384}\ns_add_u32 {s(t2)}, {s(t0)}, {RING_+32768}")
    a(f"s_cmp_eq_u32 {s(sW)}, 3\ns_cselect_b32 {s(t1)}, {RING_+49152}, {s(t1)}\ns_cselect_b32 {s(t2)}, {RING_+49152+4096}, {s(t2)}")
    a(f"s_lshl_b32 {s(t3)}, {s(sROT)}, 11\ns_add_u32 {s(t0)}, {s(t0)}, {s(t3)}")
    for i in range(4):
        a(f"s_add_u32 m0, {s(t1)}, {i*1024}\ns_and_b32 {s(t3)}, {s(t0)}, 0x3fff")
        a(f"buffer_load_dwordx4 v12, {s(rW2,4)}, {s(t3)} offen lds")
        a(f"s_add_u32 m0, {s(t2)}, {i*1024}\ns_add_u32 {s(t0)}, {s(t0)}, 1024")
        a(f"buffer_load_dwordx4 v12, {s(rWO,4)}, {s(t3)} offen lds")
    narrow_tr(12, 13)
    a(f"v_add_u32 v12, {RING_}, v12\nv_xor_b32 v13, 128, v12")
    x16_addr(14, 16)
    a(f"s_lshl_b32 {s(t0)}, {s(sW)}, 11\ns_add_u32 {s(t0)}, {s(t0)}, {X_}\nv_add_u32 v14, {s(t0)}, v14\nv_xor_b32 v15, 64, v14")
    a.c("publish address: even lane rows K, odd lane rows V")
    a(f"v_and_b32 v16, 15, v0\nv_lshlrev_b32 v16, 4, v16\nv_lshrrev_b32 v17, 5, v0")
    a(f"s_and_b32 {s(t0)}, {s(sW)}, 1\ns_lshl_b32 {s(t1)}, {s(t0)}, 8\ns_lshl_b32 {s(t0)}, {s(t0)}, 9\ns_add_u32 {s(t0)}, {s(t0)}, 1024")
    a(f"v_lshl_add_u32 v18, v17, 9, {s(t1)}\nv_lshl_add_u32 v19, v17, 8, {s(t0)}\nv_and_b32 v17, 16, v0\nv_cmp_ne_u32 vcc, 0, v17\ns_nop 1\nv_cndmask_b32 v18, v18, v19, vcc\nv_add_u32 v16, v16, v18")
    a(f"s_lshl_b32 {s(t4)}, {s(sTG)}, 1\ns_lshr_b32 {s(t0)}, {s(sW)}, 1\ns_add_u32 {s(t4)}, {s(t4)}, {s(t0)}\ns_lshl_b32 {s(t4)}, {s(t4)}, 11\ns_add_u32 {s(t4)}, {s(t4)}, {KV}")
    a(f"s_lshl_b32 {s(t5)}, {s(sTG)}, 7\ns_lshl_b32 {s(t0)}, {s(sW)}, 2\ns_add_u32 {s(t5)}, {s(t5)}, {s(t0)}\ns_add_u32 {s(t5)}, {s(t5)}, {FKV}")
    a("s_setprio 2\ns_waitcnt vmcnt(0) lgkmcnt(0)\ns_barrier")
    stamp(1)
    KA, VA, F = 20, 24, 32
    def kvp_read(ks):
        st = F + 12*(ks % 4)
        ko = 16384 + ks*1024 if ks < 12 else 49152 + (ks-12)*1024
        vo = 32768 + ks*1024 if ks < 12 else 49152 + 4096 + (ks-12)*1024
        a.lds(f"ds_read_b128 {v(st,4)}, {v(14+(ks&1))} offset:{(ks>>1)*8192}", ("f", ks))
        a.lds(f"ds_read_b64_tr_b16 {v(st+4,2)}, v12 offset:{ko}", ("f", ks))
        a.lds(f"ds_read_b64_tr_b16 {v(st+6,2)}, v13 offset:{ko}", ("f", ks))
        a.lds(f"ds_read_b64_tr_b16 {v(st+8,2)}, v12 offset:{vo}", ("f", ks))
        a.lds(f"ds_read_b64_tr_b16 {v(st+10,2)}, v13 offset:{vo}", ("f", ks))
    for ks in range(3): kvp_read(ks)
    tag_from_epoch()
    for ks in range(16):
        if ks + 3 < 16: kvp_read(ks + 3)
        st = F + 12*(ks % 4)
        a.wait(lg=("f", ks))
        a(f"v_mfma_f32_16x16x32_bf16 {v(KA,4)}, {v(st+4,4)}, {v(st,4)}, {v(KA,4) if ks else 0}")
        a(f"v_mfma_f32_16x16x32_bf16 {v(VA,4)}, {v(st,4)}, {v(st+8,4)}, {v(VA,4) if ks else 0}")
    a(f"v_mov_b32 v17, {s(sTAG)}\nv_mov_b32 v18, 0\ns_nop 4")
    a(f"v_cvt_pk_bf16_f32 v28, {v(KA)}, {v(KA+1)}\nv_cvt_pk_bf16_f32 v29, {v(KA+2)}, {v(KA+3)}")
    a(f"v_cvt_pk_bf16_f32 v30, {v(VA)}, {v(VA+1)}\nv_cvt_pk_bf16_f32 v31, {v(VA+2)}, {v(VA+3)}\ns_nop 1")
    a("v_permlane16_swap_b32 v28, v30\nv_permlane16_swap_b32 v29, v31")
    a(f"buffer_store_dwordx4 v[28:31], v16, {s(rWS,4)}, {s(t4)} offen sc1\ns_waitcnt vmcnt(0)")
    a(f"s_mov_b64 exec, 1\nbuffer_store_dword v17, v18, {s(rWS,4)}, {s(t5)} offen sc1\ns_mov_b64 exec, -1")
    stamp(2)
    a.label("L_B1")
    a(f"v_lshlrev_b32 {v(vL16)}, 4, v0\nv_lshlrev_b32 {v(vL4)}, 2, v0")
    a(f"s_mul_i32 {s(t0)}, {s(sTG)}, {HSTRIDE}\ns_add_u32 {s(t0)}, {s(t0)}, {HBUF}")
    srd(a, rH, pWS, 86*2048, off=s(t0))
    a(f"s_mul_i32 {s(t0)}, {s(sCG)}, 4\ns_add_u32 {s(t5)}, {s(t0)}, {s(sW)}")
    a(f"s_cmp_gt_u32 {s(t5)}, 28\ns_cbranch_scc1 L_Bh")
    srd(a, rA, pW1, 512*2752); srd(a, rB, pW3, 512*2752)
    a(f"s_mul_i32 {s(t0)}, {s(t5)}, 96")
    for q in range(3):
        a(f"v_add_u32 v12, {64*q}, v0\nv_mul_u32_u24 v13, 10923, v12\nv_lshrrev_b32 v13, 16, v13\nv_mul_u32_u24 v14, 6, v13\nv_sub_u32 v14, v12, v14")
        a(f"v_mul_u32_u24 v13, 2752, v13\nv_lshl_add_u32 v13, v14, 4, v13\nv_add_u32 {v(vW+q)}, {s(t0)}, v13")
    a(f"s_mul_i32 {s(sBLK)}, {s(sROT)}, {64*2752}")
    def w13_issue(slot, part, soff):
        r = rA if part < 3 else rB
        a(f"s_add_u32 m0, {s(sRING)}, {slot*SLOT + (part//3)*W3OFF + (part%3)*1024}\ns_nop 0")
        a(f"buffer_load_dwordx4 {v(vW + part%3)}, {s(r,4)}, {s(soff)} offen lds")
    def blk_next():
        a(f"s_add_u32 {s(sBLK)}, {s(sBLK)}, {32*2752}\ns_cmp_eq_u32 {s(sBLK)}, {512*2752}\ns_cselect_b32 {s(sBLK)}, 0, {s(sBLK)}")
    for b in range(2):
        for p in range(6): w13_issue(b, p, sBLK)
        blk_next()
    a.c("transpose-read address: grp*3200 + (8h+r)*96 + c*8")
    a(f"v_lshrrev_b32 v12, 5, v0\nv_lshlrev_b32 v12, 3, v12\nv_bfe_u32 v13, v0, 2, 2\nv_add_u32 v12, v12, v13\nv_mul_u32_u24 v12, 96, v12")
    a(f"v_and_b32 v13, 3, v0\nv_lshl_add_u32 v12, v13, 3, v12\nv_bfe_u32 v13, v0, 4, 1\nv_mul_u32_u24 v13, {W3OFF}, v13\nv_add3_u32 {v(vTr)}, v12, v13, {s(sRING)}")
    a.c("x fragment address (32x32x16 operand)")
    a(f"v_and_b32 v12, 31, v0\nv_bfe_u32 v13, v0, 1, 3\nv_lshrrev_b32 v14, 5, v0\nv_xor_b32 v13, v13, v14\nv_lshlrev_b32 v13, 4, v13\nv_lshl_add_u32 v12, v12, 7, v13\nv_add_u32 {v(vXb)}, {X_}, v12")
    for j in range(1, 4): a(f"v_xor_b32 {v(vXb+j)}, {32*j}, {v(vXb)}")
    for i in range(96): a(f"v_mov_b32 {v(ACC+i)}, 0")
    a(f"s_cmp_eq_u32 {s(sCG)}, 7\ns_cbranch_scc1 L_B2\ns_waitcnt vmcnt(12) lgkmcnt(0)\ns_barrier")
    tag_from_epoch()
    stamp(1)
    a.label("L_B2")
    a("s_setprio 0")
    def trs(st):
        return [f"ds_read_b64_tr_b16 {v(WF+24*st+12*ks+4*u+2*rd,2)}, {v(vTr)} offset:{st*SLOT + ks*1536 + rd*384 + u*32}"
                for ks in range(2) for u in range(3) for rd in range(2)]
    def xrs(st, off):
        return [f"ds_read_b128 {v(XB+16*st+8*ks+4*t,4)}, {v(vXb+2*st+ks)} offset:{off + t*4096}" for ks in range(2) for t in range(2)]
    for x in xrs(0, 0): a(x)
    a("s_waitcnt vmcnt(6)")
    for x in trs(0): a(x)
    a(f"s_mov_b32 {s(t0)}, 8\ns_mov_b32 {s(sOOB)}, {s(sBLK)}\ns_waitcnt lgkmcnt(0)")
    a(".p2align 3")
    a.label("L_ffn1")
    for st in range(2):
        M = [f"v_mfma_f32_32x32x16_bf16 {v(ACC+16*(2*u+t),16)}, {v(WF+24*st+12*ks+4*u,4)}, {v(XB+16*st+8*ks+4*t,4)}, {v(ACC+16*(2*u+t),16)}"
             for ks in range(2) for u in range(3) for t in range(2)]
        T = trs(st ^ 1); XR = xrs(st ^ 1, 8192 if st else 0)
        for k in range(3):
            a(M[k]); w13_issue(st, 2*k, sOOB); w13_issue(st, 2*k+1, sOOB)
        for x in XR: a(x)
        a(M[3]); a("s_waitcnt vmcnt(6)")
        for k in range(4):
            for x in T[3*k:3*k+3]: a(x)
            a(M[4+k])
        blk_next()
        if st == 1: a(f"s_sub_u32 {s(t0)}, {s(t0)}, 1")
        a(f"s_cmp_gt_u32 {s(t0)}, 1\ns_cselect_b32 {s(sOOB)}, {s(sBLK)}, 0x7ff00000")
        a(M[8])
        if st == 1:
            a("s_setprio 2")
            for j in range(4): a(f"v_add_u32 {v(vXb+j)}, 0x2000, {v(vXb+j)}")
            a("s_setprio 0")
        a(M[9]); a(M[10]); a(M[11])
        a("s_waitcnt lgkmcnt(0)")
    a(f"s_cmp_lg_u32 {s(t0)}, 0\ns_cbranch_scc1 L_ffn1")
    stamp(3)
    a.c("SwiGLU epilogue")
    a(f"s_setprio 2\ns_mov_b32 {s(sC0)}, {f32(-math.log2(math.e))}\ns_mov_b32 {s(sC0+1)}, {s(sC0)}\ns_mov_b32 {s(sC0+2)}, 1.0\ns_mov_b32 {s(sC0+3)}, 1.0")
    a(f"s_mul_i32 {s(t0)}, {s(t5)}, {3*2048}")
    TM = 192
    for u in range(3):
        for t in range(2):
            A_ = ACC + 16*(2*u+t)
            for i in range(0, 8, 2): a(f"v_pk_mul_f32 {v(TM+i,2)}, {v(A_+i,2)}, {s(sC0,2)}")
            for i in range(8): a(f"v_exp_f32 {v(TM+i)}, {v(TM+i)}")
            for i in range(0, 8, 2): a(f"v_pk_mul_f32 {v(A_+i,2)}, {v(A_+i,2)}, {v(A_+8+i,2)}")
            for i in range(0, 8, 2): a(f"v_pk_add_f32 {v(TM+i,2)}, {v(TM+i,2)}, {s(sC0+2,2)}")
            for i in range(8): a(f"v_rcp_f32 {v(TM+i)}, {v(TM+i)}")
            for i in range(0, 8, 2): a(f"v_pk_mul_f32 {v(A_+i,2)}, {v(A_+i,2)}, {v(TM+i,2)}")
            for i in range(4): a(f"v_cvt_pk_bf16_f32 {v(A_+8+i)}, {v(A_+2*i)}, {v(A_+2*i+1)}")
            a(f"buffer_store_dwordx4 {v(A_+8,4)}, {v(vL16)}, {s(rH,4)}, {s(t0)} offen offset:{t*1024} sc1")
        if u < 2: a(f"s_add_u32 {s(t0)}, {s(t0)}, 2048")
    a.label("L_Bh")
    a.reset()
    a("s_setprio 2")
    stamp(4)
    a.c("clear this wave's two o tiles to the not-yet-written sentinel")
    vOst, vD, vT2, vIDXb, vOa = 1, 2, 3, 5, 6
    sO0 = 83
    obuf_voff(vOst, 12)
    a(f"s_lshl_b32 {s(t0)}, {s(sW)}, 1")
    obuf_soff(sO0, t0, t2)
    a("v_mov_b32 v12, -1\nv_mov_b32 v13, -1\nv_mov_b32 v14, -1\nv_mov_b32 v15, -1")
    a.vmem(f"buffer_store_dwordx4 v[12:15], {v(vOst)}, {s(rWS,4)}, {s(sO0)} offen sc1", "st")
    a.vmem(f"buffer_store_dwordx4 v[12:15], {v(vOst)}, {s(rWS,4)}, {s(sO0)} offen offset:1024 sc1", "st")
    srd(a, rW2, pW2, 1376*1024); srd(a, rWO, pWO, 512*1024)
    a.c("128-byte-row DMA source: slot holds chunk slot ^ (4*((row>>1)&1))")
    a(f"v_lshrrev_b32 v16, 3, v0\nv_and_b32 v17, 7, v0\nv_lshrrev_b32 v18, 2, v0\nv_and_b32 v18, 4, v18\nv_xor_b32 v17, v17, v18\nv_lshlrev_b32 v17, 4, v17")
    a(f"s_lshl_b32 {s(t0)}, {s(sCG)}, 7\nv_lshl_add_u32 v16, v16, 10, v17\nv_add_u32 {v(vD)}, {s(t0)}, v16")
    a.c("w2 transpose-read: row 4h+r, chunk 4cu+2grp+(c>>1), sub c&1")
    a(f"v_lshrrev_b32 v16, 5, v0\nv_bfe_u32 v17, v0, 2, 2\nv_lshl_add_u32 v16, v16, 2, v17\nv_lshlrev_b32 v16, 7, v16")
    a(f"v_bfe_u32 v17, v0, 4, 1\nv_lshl_add_u32 v16, v17, 5, v16\nv_and_b32 v17, 3, v0\nv_lshl_add_u32 v16, v17, 3, v16")
    a(f"v_and_b32 v17, 8, v0\nv_lshl_add_u32 v16, v17, 3, v16\nv_add_u32 {v(vT2)}, {s(sRING)}, v16\nv_xor_b32 {v(vT2+1)}, 64, {v(vT2)}")
    a(f"v_mov_b32 {v(vIDXb)}, {hex(IDX)}\ns_lshl_b32 {s(t0)}, {s(sW)}, 9\nv_add_u32 {v(vOa)}, {s(t0)}, {v(vL4)}")
    lds_wait(vL4, CA_, 4, 16, 1)
    a.c("producer workgroups: all four B waves must be done with the wk / wv image before rings are reused")
    a(f"ds_add_u32 {v(vL4)}, {v(vIDXb)} offset:{CB_}")
    a(f"s_cmp_lg_u32 {s(sCG)}, 7\ns_cbranch_scc1 L_B3")
    lds_wait(vL4, CB_, 4, 16, 1)
    a.label("L_B3")
    sW2o, sHo = 84, 85
    a(f"s_mul_i32 {s(sW2o)}, {s(sW)}, {22*16384}\ns_mul_i32 {s(sHo)}, {s(sW)}, {22*2048}")
    NS, D2 = 22, 8
    ACC2, HF, W2F = 16, 80, 144
    def w2_issue(sg):
        for j in range(2):
            a(f"s_add_u32 m0, {s(sRING)}, {(sg % D2)*2048 + j*1024}\ns_add_u32 {s(t0)}, {s(sW2o)}, {sg*16384 + j*8192}")
            dma(vD, rW2, s(t0), ("w2", sg))
    def h_issue(sg):
        a(f"s_add_u32 {s(t1)}, {s(sHo)}, {sg*2048}")
        for t in range(2):
            a.vmem(f"buffer_load_dwordx4 {v(HF+8*(sg%D2)+4*t,4)}, {v(vL16)}, {s(rH,4)}, {s(t1)} offen offset:{t*1024} sc1", ("h", sg))
    for sg in range(D2): w2_issue(sg)
    a.wait(vm="st")
    a(f"s_lshl_b32 {s(t0)}, {s(sTG)}, 10\ns_add_u32 {s(t3)}, {s(t0)}, {FH}\ns_lshl_b32 {s(t0)}, {s(sCG)}, 7\ns_lshl_b32 {s(t1)}, {s(sW)}, 2\ns_add_u32 {s(t0)}, {s(t0)}, {s(t1)}\ns_add_u32 {s(t0)}, {s(t0)}, {s(t3)}")
    a(f"v_mov_b32 v17, {s(sTAG)}\nv_mov_b32 v18, 0")
    a(f"s_mov_b64 exec, 1\nbuffer_store_dword v17, v18, {s(rWS,4)}, {s(t0)} offen sc1\ns_mov_b64 exec, -1")
    a(f"ds_add_u32 {v(vOa)}, {v(vIDXb)} offset:{OS_+9*2048}\nds_add_u32 {v(vOa)}, {v(vIDXb)} offset:{OS_+9*2048+256}")
    a(f"v_lshrrev_b32 v16, 2, v0\nv_and_b32 v16, 7, v16\nv_and_b32 v17, 3, v0\nv_lshlrev_b32 v17, 2, v17\nv_lshl_add_u32 v16, v16, 7, v17")
    stamp(5)
    spin_init(); a.label("L_hpoll")
    a(f"buffer_load_dword v17, v16, {s(rWS,4)}, {s(t3)} offen sc1\ns_waitcnt vmcnt(0)")
    a(f"v_cmp_ne_u32 vcc, {s(sTAG)}, v17")
    spin_back("L_hpoll", 4)
    a.reset()
    stamp(6)
    a("s_setprio 0")
    for sg in range(D2): h_issue(sg)
    def w2_pull(sg):
        a.wait(vm=("w2", sg))
        for cu in range(2):
            for rd in range(2):
                a.lds(f"ds_read_b64_tr_b16 {v(W2F+8*(sg&1)+4*cu+2*rd,2)}, {v(vT2+cu)} offset:{(sg%D2)*2048 + rd*1024}", ("t", sg))
    a(f"s_lshl_b32 {s(t4)}, {s(sW)}, 14\ns_add_u32 {s(t4)}, {s(t4)}, {X_}\ns_lshl_b32 {s(t5)}, {s(sW)}, 17")
    def wo_issue(j):
        a(f"s_add_u32 m0, {s(t4)}, {j*1024}\ns_add_u32 {s(t0)}, {s(t5)}, {j*8192}")
        dma(vD, rWO, s(t0), "wo")
    w2_pull(0)
    a.wait(lg=("t", 0))
    w2_issue(D2)
    wo_n = 0
    for sg in range(NS):
        if sg + 1 < NS: w2_pull(sg + 1)
        a.wait(vm=("h", sg))
        for cu in range(2):
            for t in range(2):
                d = ACC2 + 16*(2*cu+t)
                a(f"v_mfma_f32_32x32x16_bf16 {v(d,16)}, {v(W2F+8*(sg&1)+4*cu,4)}, {v(HF+8*(sg%D2)+4*t,4)}, {v(d,16) if sg else 0}")
        if sg + D2 < NS: h_issue(sg + D2)
        if sg + 1 < NS: a.wait(lg=("t", sg + 1))
        if sg + 1 + D2 < NS: w2_issue(sg + 1 + D2)
        else:
            for _ in range(2):
                if wo_n < 16: wo_issue(wo_n); wo_n += 1
    assert wo_n == 16
    stamp(7)
    a.c("dump partial sums, reduce across the four B waves into 16-token ownership")
    a(f"s_setprio 2\nv_and_b32 v12, 31, v0\nv_lshlrev_b32 v12, 4, v12\nv_lshrrev_b32 v13, 5, v0\nv_lshl_add_u32 v12, v13, 10, v12\nv_add_u32 v12, {s(sRING)}, v12")
    a(f"v_and_b32 v14, 15, v0\nv_lshrrev_b32 v13, 4, v0\nv_lshlrev_b32 v13, 11, v13\nv_lshl_add_u32 v13, v14, 4, v13")
    a(f"s_lshl_b32 {s(t0)}, {s(sW)}, 8\ns_add_u32 {s(t0)}, {s(t0)}, {RING_}\nv_add_u32 v13, {s(t0)}, v13")
    a(f"s_lshl_b32 {s(t0)}, {s(sW)}, 6\nv_lshl_add_u32 v15, v14, 2, {s(t0)}")
    for cu in range(2):
        for t in range(2):
            for qd in range(4):
                a(f"ds_write_b128 v12, {v(ACC2+16*(2*cu+t)+4*qd,4)} offset:{cu*8192+qd*2048+t*512}")
    a.wait_all(lg=False)
    a(f"ds_add_u32 {v(vL4)}, {v(vIDXb)} offset:{CB_}")
    a.c("epoch hand-over: the last workgroup to get here stores the new epoch")
    a("v_mov_b32 v7, 1\nv_mov_b32 v8, 0")
    a(f"s_cmp_lg_u32 {s(sW)}, 3\ns_cbranch_scc1 L_B4")
    srd(a, rDBG, pDBG, 256)
    a(f"s_mov_b64 exec, 1\nbuffer_atomic_add v7, v8, {s(rDBG,4)}, 0 offen sc0 sc1\ns_mov_b64 exec, -1")
    a.label("L_B4")
    a.c("wo transpose-read: row 16*(kg>>1) + 4*(kg&1) + r, chunk 4*a2 + c")
    vT3 = 3
    a(f"v_lshrrev_b32 v80, 5, v0\nv_lshlrev_b32 v80, 4, v80\nv_bfe_u32 v81, v0, 2, 3\nv_add_u32 v80, v80, v81\nv_lshlrev_b32 v80, 7, v80")
    a(f"v_and_b32 v81, 3, v0\nv_lshl_add_u32 v80, v81, 4, v80\nv_and_b32 v81, 8, v0\nv_lshl_add_u32 v80, v81, 3, v80")
    a(f"v_add_u32 {v(vT3)}, {X_}, v80\nv_xor_b32 {v(vT3+1)}, 64, {v(vT3)}")
    lds_wait(vL4, CB_, 8, 80, 1)
    AO, RT, OF, WOF = 16, 32, 96, 128
    for src in range(4):
        for ac in range(4):
            a.lds(f"ds_read_b128 {v(AO+16*src+4*ac,4)}, v13 offset:{src*16384+(ac>>1)*8192+(ac&1)*1024}", ("r", src))
    a.lds(f"ds_read_b32 v80, v15 offset:{G1_}", "g1")
    for src in range(1, 4):
        a.wait(lg=("r", src))
        for i in range(0, 16, 2): a(f"v_pk_add_f32 {v(AO+i,2)}, {v(AO+i,2)}, {v(AO+16*src+i,2)}")
    a.wait(lg="g1")
    for i in range(16): a(f"v_mul_f32 {v(AO+i)}, {v(AO+i)}, v80")
    def wo_pull(r):
        for ci in range(8):
            for ac in range(4):
                for rd in range(2):
                    a(f"ds_read_b64_tr_b16 {v(WOF+16*ci+4*ac+2*rd,2)}, {v(vT3+(ac>>1))} offset:{(2*ci+r)*4096+rd*1024+(ac&1)*8}")
    wo_pull(0)
    stamp(8)
    a.c("finalise tile 2w")
    a(f"s_and_b32 {s(t0)}, {s(sW)}, 1\ns_lshl_b32 {s(t0)}, {s(t0)}, 7\nv_and_b32 v12, 31, v0\nv_lshl_add_u32 v12, v12, 2, {s(t0)}")
    a(f"ds_read_b32 v48, v12 offset:{G_}\nv_lshlrev_b32 v13, 2, {v(vOa)}")
    lds_wait(vOa, OS_+9*2048, 5, 14, 2)
    for r in range(0, 8, 2): a(f"ds_read2st64_b32 {v(RT+r,2)}, {v(vOa)} offset0:{(OS_+r*2048)//256} offset1:{(OS_+(r+1)*2048)//256}")
    a(f"ds_read_b32 {v(RT+8)}, {v(vOa)} offset:{OS_+8*2048}\ns_waitcnt lgkmcnt(0)")
    finalize(RT, None, vOst, sO0, 48, "L_slowB", "L_backB")
    stamp(9)
    sOr = 86
    a(f"s_lshl_b32 {s(t0)}, {s(sTG)}, 16\ns_lshl_b32 {s(t1)}, {s(sW)}, 14\ns_add_u32 {s(t0)}, {s(t0)}, {s(t1)}")
    for i in range(4): a(f"s_add_u32 {s(sOr+i)}, {s(t0)}, {OBUF + i*4096}")
    def o_round(r, sleep):
        lbl = f"L_opoll{r}"
        spin_init(); a.label(lbl)
        for ci in range(8):
            a(f"buffer_load_dwordx4 {v(OF+4*ci,4)}, {v(vL16)}, {s(rWS,4)}, {s(sOr+ci//2)} offen offset:{(ci&1)*2048+r*1024} sc1")
        a("s_waitcnt vmcnt(5)")
        a(f"v_max3_u32 v12, {v(OF)}, {v(OF+4)}, {v(OF+8)}\ns_waitcnt vmcnt(3)\nv_max3_u32 v12, v12, {v(OF+12)}, {v(OF+16)}")
        a(f"s_waitcnt vmcnt(1)\nv_max3_u32 v12, v12, {v(OF+20)}, {v(OF+24)}\ns_waitcnt vmcnt(0) lgkmcnt(0)\nv_max_u32 v12, v12, {v(OF+28)}")
        a("v_cmp_eq_u32 vcc, -1, v12")
        spin_back(lbl, sleep)
        if r == 0: a("s_setprio 0")
        for ci in range(8):
            for ac in range(4):
                a(f"v_mfma_f32_16x16x32_bf16 {v(AO+4*ac,4)}, {v(WOF+16*ci+4*ac,4)}, {v(OF+4*ci,4)}, {v(AO+4*ac,4)}")
    a("s_sleep 8")
    o_round(0, 4)
    stamp(10)
    wo_pull(1)
    a("s_setprio 2")
    a(f"s_cmp_lg_u32 {s(sW)}, 3\ns_cbranch_scc1 L_B5")
    a(f"v_readfirstlane_b32 {s(t0)}, v7\ns_nop 3\ns_cmp_lg_u32 {s(t0)}, 255\ns_cbranch_scc1 L_B5")
    a(f"v_mov_b32 v7, {s(sTAG)}\ns_mov_b64 exec, 1\nbuffer_store_dword v7, v8, {s(rWS,4)}, 0 offen sc1\ns_mov_b64 exec, -1")
    a.label("L_B5")
    srd(a, rOUT, pOUT, 2048*1024)
    a(f"v_and_b32 v14, 15, v0\nv_and_b32 v15, 48, v0\nv_lshl_add_u32 v15, v14, 10, v15")
    a(f"s_lshl_b32 {s(t4)}, {s(sTG)}, 16\ns_lshl_b32 {s(t1)}, {s(sW)}, 14\ns_add_u32 {s(t4)}, {s(t4)}, {s(t1)}\ns_lshl_b32 {s(t1)}, {s(sCG)}, 7\ns_add_u32 {s(t4)}, {s(t4)}, {s(t1)}")
    a("s_barrier")
    stamp(11)
    o_round(1, None)
    a("s_nop 4")
    for i in range(8): a(f"v_cvt_pk_bf16_f32 {v(RT+i)}, {v(AO+2*i)}, {v(AO+2*i+1)}")
    a(f"buffer_store_dwordx4 {v(RT,4)}, v15, {s(rOUT,4)}, {s(t4)} offen")
    a(f"buffer_store_dwordx4 {v(RT+4,4)}, v15, {s(rOUT,4)}, {s(t4)} offen offset:64")
    stamp(12); stamp_out()
    a.label("L_end")
    a("s_endpgm")
    slow_path("L_slowA", "L_backA", 48, 2, 68)
    slow_path("L_slowB", "L_backB", RT, 13, 52)

    ref = open("cdna_kernels/" + NAME + ".s.ref").read().split("\n")
    head = [l for l in ref if l.startswith(";") and "@launch" not in l and "Override" not in l and "grid=ceil" not in l]
    out = "\n".join(head) + f"\n; @launch grid=(256,1,1) block=(512,1,1) lds={LDS_BYTES}\n"
    out += f""".amdgcn_target "amdgcn-amd-amdhsa--gfx950"
.text
.globl {NAME}_kernel
.p2align 8
.type {NAME}_kernel,@function
{NAME}_kernel:
"""
    out += a.text()
    out += f""".section .rodata,"a"
.p2align 6
.amdhsa_kernel {NAME}_kernel
  .amdhsa_next_free_vgpr 256
  .amdhsa_next_free_sgpr 102
  .amdhsa_accum_offset 256
  .amdhsa_group_segment_fixed_size 0
  .amdhsa_kernarg_size 104
  .amdhsa_user_sgpr_count 2
  .amdhsa_user_sgpr_kernarg_segment_ptr 1
  .amdhsa_system_sgpr_workgroup_id_x 1
  .amdhsa_float_denorm_mode_32 3
.end_amdhsa_kernel
"""
    errs = check_hazards(a.text())
    for e in errs: print("HAZARD need %d have %d:\n   %d: %s\n   %d: %s" % (e[2], e[3], e[0], e[4], e[1], e[5]), file=sys.stderr)
    return out, errs

if __name__ == "__main__":
    kw = {}
    path = "cdna_kernels/" + NAME + ".s"
    for arg in sys.argv[1:]:
        if "=" in arg:
            k, val = arg.split("=", 1)
            kw[k] = int(val) if val.lstrip("-").isdigit() else val
        else: path = arg
    out, errs = gen(**kw)
    open(path, "w").write(out)
    print("wrote", path, len(out.split("\n")), "lines;", len(errs), "hazards")
```

```python
import sys, struct, math
from asmlib import Asm, v, s, check_hazards

NAME = "gated_mix__grouped_kv_mqa__glu_gated_swiglu__prompt"
def f32(x): return "0x%08x" % struct.unpack("<I", struct.pack("<f", x))[0]

DEFAULT = dict(STAMP=0, MAP="tok", FORCE_SLOW=0, LO=-40, HI=60, SPIN=200000)

Q_, O1_, L_, GW_, G_, G1_, CA_, CB_, RING_, X_ = 0, 0, 24576, 30720, 31744, 32000, 32256, 32512, 32768, 98304
LDS_BYTES = 163840
W3OFF = 3200
SLOTOFF = (8192, 0)
FKV, FH, KV, OBUF, HBUF, STAMPS = 0x1000, 0x2000, 0x10000, 0x100000, 0x400000, 0xA00000
HSTRIDE = 0x2C000
WS_BYTES = 0xB00000
IDX = 0xDDDDDDDD
pX, pWQ, pWK, pWV, pWO, pW1, pW3, pW2, pGW, pOUT, pDBG, pWS = 4, 6, 8, 10, 12, 16, 18, 20, 22, 24, 26, 28
sTAG, sSPIN = 30, 31
rX, rA, rB, rWS, rH, rW2, rWO, rOUT, rDBG = 32, 36, 40, 44, 48, 52, 56, 60, 64
sTG, sCG, sROT, sW, sWV = 68, 69, 70, 71, 72
t0, t1, t2, t3, t4, t5 = 73, 74, 75, 76, 77, 78
sC0 = 96
sKV = 80
VST = 15

def srd(a, r, p, nbytes, off=None):
    if off is None:
        a(f"s_mov_b32 {s(r)}, {s(p)}\ns_mov_b32 {s(r+1)}, {s(p+1)}")
    else:
        a(f"s_add_u32 {s(r)}, {s(p)}, {off}\ns_addc_u32 {s(r+1)}, {s(p+1)}, 0")
    a(f"s_mov_b32 {s(r+2)}, {nbytes}\ns_mov_b32 {s(r+3)}, 0x20000")

def gen(**kw):
    P = dict(DEFAULT); P.update(kw)
    a = Asm()
    def stamp(k):
        if P["STAMP"]:
            a("s_memrealtime s[100:101]"); a("s_memtime s[14:15]"); a.wait_all(vm=False)
            a(f"v_writelane_b32 v{VST}, s100, {k}\nv_writelane_b32 v{VST}, s14, {k+16}")
    def cyc(k):
        if P["STAMP"]:
            a("s_memtime s[100:101]"); a.wait_all(vm=False)
            a(f"v_writelane_b32 v{VST}, s100, {k}")
    def stamp_out():
        if P["STAMP"]:
            cyc(15)
            a(f"s_lshl_b32 {s(t0)}, s2, 3\ns_add_u32 {s(t0)}, {s(t0)}, {s(sWV)}\ns_lshl_b32 {s(t0)}, {s(t0)}, 8\ns_add_u32 {s(t0)}, {s(t0)}, {STAMPS}")
            a(f"v_lshlrev_b32 v8, 2, v0\nbuffer_store_dword v{VST}, v8, {s(rWS,4)}, {s(t0)} offen")
    def dma(voff, r, soff, tag, flags=""):
        a.vmem(f"buffer_load_dwordx4 {v(voff)}, {s(r,4)}, {soff} offen lds {flags}".strip(), tag)
    def spin_init(): a(f"s_mov_b32 {s(sSPIN)}, {P['SPIN']}")
    def spin_back(lbl, sleep=None):
        out = a.newlabel("L_ok")
        a(f"s_cbranch_vccz {out}")
        if sleep: a(f"s_sleep {sleep}")
        a(f"s_sub_u32 {s(sSPIN)}, {s(sSPIN)}, 1\ns_cmp_lg_u32 {s(sSPIN)}, 0\ns_cbranch_scc1 {lbl}")
        a.label(out)
    def lds_wait(addr, off, count, tmp, sleep=None):
        lbl = a.newlabel("L_lw"); spin_init(); a.label(lbl)
        a(f"ds_read_b32 {v(tmp)}, {v(addr)} offset:{off}"); a.wait_all(vm=False)
        a(f"v_cmp_gt_u32 vcc, {count}, {v(tmp)}")
        spin_back(lbl, sleep)
    def narrow_src(dst, tmp, shift):
        a.c("32-byte-row DMA source: slot rho=lane>>1 holds row rho ^ (4*((rho>>3)&1))")
        a(f"v_lshrrev_b32 {v(dst)}, 1, v0\nv_lshrrev_b32 {v(tmp)}, 2, v0\nv_and_b32 {v(tmp)}, 4, {v(tmp)}\nv_xor_b32 {v(dst)}, {v(dst)}, {v(tmp)}")
        a(f"v_and_b32 {v(tmp)}, 1, v0\nv_lshlrev_b32 {v(tmp)}, 4, {v(tmp)}\nv_lshl_add_u32 {v(dst)}, {v(dst)}, {shift}, {v(tmp)}")

    a("s_cmp_ge_u32 s2, 256\ns_cbranch_scc1 L_end")
    a("s_load_dwordx16 s[4:19], s[0:1], 0\ns_load_dwordx8 s[20:27], s[0:1], 64\ns_load_dwordx2 s[28:29], s[0:1], 96")
    a(f"v_lshrrev_b32 v1, 6, v0\nv_and_b32 v0, 63, v0\nv_readfirstlane_b32 {s(sWV)}, v1")
    if P["MAP"] == "tok":
        a(f"s_and_b32 {s(sTG)}, s2, 31\ns_lshr_b32 {s(t0)}, s2, 5\ns_sub_u32 {s(sCG)}, 7, {s(t0)}")
        a(f"s_lshr_b32 {s(t0)}, {s(sTG)}, 3\ns_lshl_b32 {s(t0)}, {s(t0)}, 1\ns_add_u32 {s(sROT)}, {s(t0)}, {s(sTG)}\ns_add_u32 {s(sROT)}, {s(sROT)}, {s(sCG)}")
    elif P["MAP"] == "col":
        a(f"s_and_b32 {s(sCG)}, s2, 7\ns_lshr_b32 {s(sTG)}, s2, 3\ns_add_u32 {s(sROT)}, {s(sTG)}, {s(sCG)}")
    elif P["MAP"] == "4x2":
        a(f"s_lshr_b32 {s(t0)}, s2, 6\ns_sub_u32 {s(t0)}, 3, {s(t0)}\ns_and_b32 {s(t1)}, s2, 4\ns_add_u32 {s(sCG)}, {s(t0)}, {s(t1)}")
        a(f"s_bfe_u32 {s(t2)}, s2, 0x30003\ns_lshl_b32 {s(t0)}, {s(t0)}, 1\ns_add_u32 {s(sROT)}, {s(t0)}, {s(t2)}")
        a(f"s_lshl_b32 {s(t0)}, {s(t2)}, 2\ns_and_b32 {s(t1)}, s2, 3\ns_add_u32 {s(sTG)}, {s(t0)}, {s(t1)}")
    elif P["MAP"] == "2x4":
        a(f"s_lshr_b32 {s(t0)}, s2, 7\ns_sub_u32 {s(t0)}, 1, {s(t0)}\ns_and_b32 {s(t1)}, s2, 6\ns_add_u32 {s(sCG)}, {s(t0)}, {s(t1)}")
        a(f"s_bfe_u32 {s(t2)}, s2, 0x40003\ns_lshl_b32 {s(t0)}, {s(t0)}, 2\ns_add_u32 {s(sROT)}, {s(t0)}, {s(t2)}\ns_lshr_b32 {s(t1)}, {s(sCG)}, 1\ns_add_u32 {s(sROT)}, {s(sROT)}, {s(t1)}")
        a(f"s_lshl_b32 {s(t0)}, {s(t2)}, 1\ns_and_b32 {s(t1)}, s2, 1\ns_add_u32 {s(sTG)}, {s(t0)}, {s(t1)}")
    a(f"s_and_b32 {s(sROT)}, {s(sROT)}, {0 if P.get('NOROT') else 7}\ns_and_b32 {s(sW)}, {s(sWV)}, 3")
    vXs, vD = 1, 2
    a.c("x tile source: row lane>>3, slot lane&7 holds chunk slot ^ ((token>>1)&7);  128-byte-row weights: chunk slot ^ (4*((row>>1)&1))")
    a("v_lshrrev_b32 v3, 3, v0\nv_lshlrev_b32 v3, 10, v3\nv_and_b32 v4, 7, v0\nv_lshrrev_b32 v5, 4, v0\nv_xor_b32 v5, v4, v5")
    a(f"s_and_b32 {s(t0)}, {s(sWV)}, 1\ns_lshl_b32 {s(t0)}, {s(t0)}, 2\nv_xor_b32 v5, {s(t0)}, v5\nv_lshl_add_u32 v5, v5, 4, v3")
    a(f"s_lshl_b32 {s(t0)}, {s(sTG)}, 16\ns_lshl_b32 {s(t1)}, {s(sWV)}, 13\ns_add_u32 {s(t0)}, {s(t0)}, {s(t1)}\nv_add_u32 {v(vXs)}, {s(t0)}, v5")
    a(f"v_lshrrev_b32 v5, 2, v0\nv_and_b32 v5, 4, v5\nv_xor_b32 v5, v4, v5\nv_lshl_add_u32 v5, v5, 4, v3\ns_lshl_b32 {s(t0)}, {s(sCG)}, 7\nv_add_u32 {v(vD)}, {s(t0)}, v5")
    a(f"s_lshl_b32 {s(t0)}, {s(sROT)}, 7\ns_lshl_b32 {s(t2)}, {s(sROT)}, 16\ns_add_u32 {s(t1)}, {s(t1)}, {s(t2)}\ns_lshl_b32 {s(t2)}, {s(sWV)}, 10")
    if P["STAMP"]: a(f"v_mov_b32 v{VST}, 0")
    a(f"s_mov_b32 {s(rX+2)}, {2048*1024}\ns_mov_b32 {s(rX+3)}, 0x20000\ns_mov_b32 {s(rA+2)}, {512*1024}\ns_mov_b32 {s(rA+3)}, 0x20000")
    a("s_waitcnt lgkmcnt(0)")
    stamp(0); cyc(14)
    a(f"s_mov_b32 {s(rX)}, {s(pX)}\ns_mov_b32 {s(rX+1)}, {s(pX+1)}\ns_mov_b32 {s(rA)}, {s(pWQ)}\ns_mov_b32 {s(rA+1)}, {s(pWQ+1)}")
    a(f"s_load_dword {s(sTAG)}, {s(pWS,2)}, 0")
    def x_issue(kb):
        a(f"s_add_u32 m0, {s(t2)}, {X_+kb*8192}\ns_and_b32 {s(t0)}, {s(t0)}, 0x3ff")
        dma(vXs, rX, s(t0), ("x", kb)); a(f"s_add_u32 {s(t0)}, {s(t0)}, 128")
    def wq_lds(kb): return RING_ + (kb & 3)*16384 + (kb >> 2)*8192
    def wq_issue(kb):
        a(f"s_add_u32 m0, {s(t2)}, {wq_lds(kb)}\ns_and_b32 {s(t1)}, {s(t1)}, 0x7ffff")
        dma(vD, rA, s(t1), ("wq", kb)); a(f"s_add_u32 {s(t1)}, {s(t1)}, 0x10000")
    a(f"s_cmp_eq_u32 {s(sCG)}, 7\ns_cbranch_scc1 L_P0")
    for kb in range(8):
        x_issue(kb); wq_issue(kb)
        if P.get("STAMP2"): cyc(48+kb)
    a("s_branch L_P1")
    a.label("L_P0")
    a.c("producer workgroups: x and wk / wv first, wq afterwards.  image: k-step*2048 + matrix*1024")
    a.reset()
    x_issue(0); x_issue(1)
    narrow_src(3, 4, 5)
    a(f"s_bitcmp1_b32 {s(sWV)}, 0\ns_cselect_b32 {s(rB)}, {s(pWV)}, {s(pWK)}\ns_cselect_b32 {s(rB+1)}, {s(pWV+1)}, {s(pWK+1)}\ns_mov_b32 {s(rB+2)}, 16384\ns_mov_b32 {s(rB+3)}, 0x20000")
    a(f"s_lshr_b32 {s(t3)}, {s(sWV)}, 1\ns_lshl_b32 {s(t4)}, {s(sROT)}, 1\ns_add_u32 {s(t3)}, {s(t3)}, {s(t4)}\ns_lshl_b32 {s(t3)}, {s(t3)}, 10")
    for p in range(4):
        if p: x_issue(2*p); x_issue(2*p+1)
        a(f"s_add_u32 m0, {s(t2)}, {p*8192}\ns_and_b32 {s(t3)}, {s(t3)}, 0x3fff")
        dma(3, rB, s(t3), ("kv", p)); a(f"s_add_u32 {s(t3)}, {s(t3)}, 4096")
    for kb in range(8): wq_issue(kb)
    a.label("L_P1")
    srd(a, rWS, pWS, WS_BYTES)
    a(f"s_cmp_ge_u32 {s(sWV)}, 4\ns_cbranch_scc1 L_B")

    def tag_from_epoch():
        a(f"s_mul_i32 {s(sTAG)}, {s(sTAG)}, 0x9E3779B1\ns_add_u32 {s(sTAG)}, {s(sTAG)}, 0x7F4A7C15")

    def x16_addr(dst, tmp):
        a.c("x fragment address (16x16x32 operand): n*128 + ((G ^ (n>>1))*16)")
        a(f"v_and_b32 {v(tmp)}, 15, v0\nv_lshrrev_b32 {v(dst)}, 1, {v(tmp)}\nv_lshrrev_b32 {v(tmp+1)}, 4, v0\nv_xor_b32 {v(dst)}, {v(dst)}, {v(tmp+1)}")
        a(f"v_lshlrev_b32 {v(dst)}, 4, {v(dst)}\nv_lshl_add_u32 {v(dst)}, {v(tmp)}, 7, {v(dst)}")
    def narrow_tr(dst, tmp):
        a.c("transpose-read address in a 32-byte-row image: ((8G+r) ^ (4*(G&1)))*32 + c*8")
        a(f"v_lshrrev_b32 {v(tmp)}, 4, v0\nv_lshlrev_b32 {v(dst)}, 8, {v(tmp)}\nv_and_b32 {v(tmp)}, 1, {v(tmp)}\nv_lshl_add_u32 {v(dst)}, {v(tmp)}, 7, {v(dst)}")
        a(f"v_and_b32 {v(tmp)}, 15, v0\nv_lshl_add_u32 {v(dst)}, {v(tmp)}, 3, {v(dst)}")

    def x32_addr(dst, tmp, base):
        a.c("x fragment address (32x32x16 operand), four k-steps of a 64-wide block")
        a(f"v_and_b32 {v(dst)}, 31, v0\nv_bfe_u32 {v(tmp)}, v0, 1, 3\nv_lshrrev_b32 {v(tmp+1)}, 5, v0\nv_xor_b32 {v(tmp)}, {v(tmp)}, {v(tmp+1)}")
        a(f"v_lshlrev_b32 {v(tmp)}, 4, {v(tmp)}\nv_lshl_add_u32 {v(dst)}, {v(dst)}, 7, {v(tmp)}\nv_add_u32 {v(dst)}, {base}, {v(dst)}")
        for j in range(1, 4): a(f"v_xor_b32 {v(dst+j)}, {32*j}, {v(dst)}")
    def flag_voff(dst, tmp):
        a(f"v_bfe_u32 {v(dst)}, v0, 2, 3\nv_and_b32 {v(tmp)}, 3, v0\nv_lshlrev_b32 {v(tmp)}, 2, {v(tmp)}\nv_lshl_add_u32 {v(dst)}, {v(dst)}, 7, {v(tmp)}")

    def slow_path(lbl, back, T, Qf, R):
        Kf, V0, V1, S, M, vk, vv, tm = R, R+4, R+8, R+12, R+28, R+29, R+30, R+31
        a.label(lbl)
        a(f"v_lshlrev_b32 {v(vk)}, 4, v0\nv_lshrrev_b32 {v(vv)}, 5, v0\nv_lshlrev_b32 {v(vv)}, 8, {v(vv)}")
        a(f"v_and_b32 {v(tm)}, 15, v0\nv_lshl_add_u32 {v(vv)}, {v(tm)}, 4, {v(vv)}")
        a(f"v_mov_b32 {v(M)}, 0xff800000")
        for i in range(8): a(f"v_mov_b32 {v(V0+i)}, 0x3f803f80")
        for i in range(16): a(f"v_mov_b32 {v(T+i)}, 0")
        a(f"s_mov_b32 {s(t4)}, {KV}")
        l1 = a.newlabel("L_sm"); a.label(l1)
        a(f"buffer_load_dwordx4 {v(Kf,4)}, {v(vk)}, {s(rWS,4)}, {s(t4)} offen sc1\ns_waitcnt vmcnt(0)")
        a(f"v_mfma_f32_32x32x16_bf16 {v(S,16)}, {v(Kf,4)}, {v(Qf,4)}, 0\ns_nop 15")
        for i in range(8): a(f"v_max3_f32 {v(M)}, {v(M)}, {v(S+2*i)}, {v(S+2*i+1)}")
        a(f"s_add_u32 {s(t4)}, {s(t4)}, 2048\ns_cmp_lt_u32 {s(t4)}, {KV+64*2048}\ns_cbranch_scc1 {l1}")
        a(f"v_mov_b32 {v(tm)}, {v(M)}\ns_nop 1\nv_permlane32_swap_b32 {v(tm)}, {v(M)}\ns_nop 1\nv_max_f32 {v(M)}, {v(M)}, {v(tm)}")
        a(f"s_mov_b32 {s(t4)}, {KV}")
        l2 = a.newlabel("L_sp"); a.label(l2)
        a(f"buffer_load_dwordx4 {v(Kf,4)}, {v(vk)}, {s(rWS,4)}, {s(t4)} offen sc1")
        a(f"s_mov_b64 exec, {s(sC0,2)}")
        a(f"buffer_load_dwordx4 {v(V0,4)}, {v(vv)}, {s(rWS,4)}, {s(t4)} offen offset:1024 sc1")
        a(f"buffer_load_dwordx4 {v(V1,4)}, {v(vv)}, {s(rWS,4)}, {s(t4)} offen offset:1536 sc1")
        a("s_mov_b64 exec, -1\ns_waitcnt vmcnt(0)")
        a(f"v_mfma_f32_32x32x16_bf16 {v(S,16)}, {v(Kf,4)}, {v(Qf,4)}, 0\ns_nop 15")
        for i in range(16): a(f"v_sub_f32 {v(S+i)}, {v(S+i)}, {v(M)}")
        for i in range(16): a(f"v_exp_f32 {v(S+i)}, {v(S+i)}")
        a("s_nop 1")
        a(f"v_smfmac_f32_32x32x32_bf16 {v(T,16)}, {v(V0,4)}, {v(S,8)}, v1")
        a(f"v_smfmac_f32_32x32x32_bf16 {v(T,16)}, {v(V1,4)}, {v(S+8,8)}, v1")
        a(f"s_add_u32 {s(t4)}, {s(t4)}, 2048\ns_cmp_lt_u32 {s(t4)}, {KV+64*2048}\ns_cbranch_scc1 {l2}")
        a(f"s_nop 15\ns_branch {back}")

    a.c("---------------- A waves: set-up while the tiles are in flight")
    vIDX, vKo, vVo, vWO, vWL, vRO, vRL, vG, vOB, vL4 = 1, 2, 3, 4, 5, 6, 9, 12, 13, 14
    S0, S1, KVR, QF, O = 16, 32, 48, 96, 128
    sKVo, sOB = 80, 81
    vXa, vTq = 32, 36
    a(f"s_and_b32 {s(t0)}, {s(sW)}, 1\ns_lshl_b32 {s(t0)}, {s(t0)}, 12\ns_add_u32 {s(t0)}, {s(t0)}, {X_}")
    x32_addr(vXa, 16, s(t0))
    a.c("wq transpose-read: row 8h+r, chunk 4u+2grp+(c&1), sub c>>1")
    a(f"v_lshrrev_b32 v16, 5, v0\nv_bfe_u32 v17, v0, 2, 2\nv_lshl_add_u32 v16, v16, 3, v17\nv_lshlrev_b32 v16, 7, v16")
    a(f"v_bfe_u32 v17, v0, 4, 1\nv_lshl_add_u32 v16, v17, 5, v16\nv_and_b32 v17, 1, v0\nv_lshl_add_u32 v16, v17, 4, v16\nv_and_b32 v17, 2, v0\nv_lshl_add_u32 v16, v17, 2, v16")
    a(f"v_and_b32 v17, 8, v0\nv_lshl_add_u32 v16, v17, 3, v16\ns_lshr_b32 {s(t0)}, {s(sW)}, 1\ns_lshl_b32 {s(t0)}, {s(t0)}, 6\nv_xor_b32 v16, {s(t0)}, v16\nv_add_u32 {v(vTq)}, {RING_}, v16")
    a(f"v_mov_b32 {v(vIDX)}, {hex(IDX)}\nv_lshlrev_b32 {v(vL4)}, 2, v0\nv_lshlrev_b32 v16, 4, v0")
    a(f"s_lshl_b32 {s(t0)}, {s(sW)}, 15\ns_add_u32 {s(t0)}, {s(t0)}, {KV}\nv_add_u32 {v(vKo)}, {s(t0)}, v16")
    a(f"v_and_b32 v17, 15, v0\nv_lshlrev_b32 v17, 4, v17\nv_lshrrev_b32 v18, 5, v0\nv_lshl_add_u32 v17, v18, 8, v17\nv_add_u32 {v(vVo)}, {s(t0)}, v17")
    a(f"v_and_b32 v18, 16, v0\nv_lshl_add_u32 {v(vOB)}, v18, 10, v17")
    a(f"s_mul_i32 {s(t0)}, {s(sW)}, 6144\nv_add_u32 {v(vWO)}, {s(t0)}, v16\ns_mul_i32 {s(t0)}, {s(sW)}, 768\nv_add_u32 {v(vWL)}, {s(t0)}, {v(vL4)}")
    for i in range(3):
        a(f"s_add_u32 {s(t0)}, {s(sW)}, {3-i}\ns_and_b32 {s(t0)}, {s(t0)}, 3\ns_mul_i32 {s(t0)}, {s(t0)}, 3\ns_add_u32 {s(t0)}, {s(t0)}, {i}")
        a(f"s_lshl_b32 {s(t1)}, {s(t0)}, 11\nv_add_u32 {v(vRO+i)}, {s(t1)}, v16\ns_lshl_b32 {s(t1)}, {s(t0)}, 8\nv_add_u32 {v(vRL+i)}, {s(t1)}, {v(vL4)}")
    a.c("o tile address: OBUF + tg*64K + t*32K + 2cg*1K + hh_lo*512")
    a(f"s_lshl_b32 {s(sOB)}, {s(sTG)}, 16\ns_lshl_b32 {s(t0)}, {s(sCG)}, 11\ns_add_u32 {s(sOB)}, {s(sOB)}, {s(t0)}\ns_add_u32 {s(sOB)}, {s(sOB)}, {OBUF}")
    a(f"s_and_b32 {s(t0)}, {s(sW)}, 1\ns_lshl_b32 {s(t0)}, {s(t0)}, 15\ns_add_u32 {s(sOB)}, {s(sOB)}, {s(t0)}\ns_lshr_b32 {s(t0)}, {s(sW)}, 1\ns_lshl_b32 {s(t0)}, {s(t0)}, 9\ns_add_u32 {s(sOB)}, {s(sOB)}, {s(t0)}")
    a(f"s_lshr_b32 {s(sKVo)}, s2, 3\ns_lshl_b32 {s(sKVo)}, {s(sKVo)}, 11\ns_and_b32 {s(sKVo)}, {s(sKVo)}, 0x7fff")
    a(f"s_mov_b32 {s(sC0)}, 0xffff\ns_mov_b32 {s(sC0+1)}, 0xffff")
    a.c("V operand padding rows: ones in rows 16 and 20 (row sums), zero elsewhere")
    a(f"v_and_b32 v17, 27, v0\nv_cmp_eq_u32 vcc, 16, v17\nv_mov_b32 v18, 0x3f803f80\ns_nop 0\nv_cndmask_b32 v17, 0, v18, vcc")
    for sl in range(4):
        for i in range(8): a(f"v_mov_b32 {v(KVR+12*sl+4+i)}, v17")
    for i in range(8): a(f"v_mov_b32 {v(S1+8+i)}, 0")
    a("s_nop 0")
    for c in range(8): a(f"v_mfma_f32_32x32x8bf16_1k {v(O+16*c,16)}, {v(S1+8,2)}, {v(S1+8,2)}, 0")
    x16_addr(37, 16)
    a(f"s_lshl_b32 {s(t0)}, {s(sW)}, 11\ns_add_u32 {s(t0)}, {s(t0)}, {X_}\nv_add_u32 v37, {s(t0)}, v37\nv_xor_b32 v38, 64, v37\nv_and_b32 v39, 48, v0")
    a(f"s_cmp_lg_u32 {s(sCG)}, 7\ns_cbranch_scc1 L_A1")
    a("s_waitcnt vmcnt(14)\ns_barrier\ns_waitcnt vmcnt(8)\ns_barrier\ns_waitcnt vmcnt(3)")
    a.label("L_A1")
    a("s_waitcnt vmcnt(6) lgkmcnt(0)\ns_barrier")
    a.reset()
    tag_from_epoch()
    stamp(1)
    QA = 16
    def q_read(ks):
        st = QF + 8*(ks % 4); kb, j = ks >> 2, ks & 3
        a.lds(f"ds_read_b128 {v(st,4)}, {v(vXa+j)} offset:{kb*8192}", ("f", ks))
        for rd in range(2):
            a.lds(f"ds_read_b64_tr_b16 {v(st+4+2*rd,2)}, {v(vTq)} offset:{wq_lds(kb)-RING_ + j*2048 + rd*512}", ("f", ks))
    def q_mfma(ks):
        st = QF + 8*(ks % 4)
        a.wait(lg=("f", ks))
        a(f"v_mfma_f32_32x32x16_bf16 {v(QA,16)}, {v(st+4,4)}, {v(st,4)}, {v(QA,16) if ks else 0}")
    for ks in range(3): q_read(ks)
    for ks in range(32):
        if ks + 3 == 20:
            a.wait_all(); a("s_barrier")
        if ks + 3 < 32: q_read(ks + 3)
        if ks + 3 == 32:
            a.wait_all(vm=False); a("s_barrier")
        q_mfma(ks)
    stamp(2)
    a.c("sentinels, gate operands, q epilogue")
    a("v_mov_b32 v32, -1\nv_mov_b32 v33, -1\nv_mov_b32 v34, -1\nv_mov_b32 v35, -1")
    a(f"buffer_store_dwordx4 v[32:35], {v(vOB)}, {s(rWS,4)}, {s(sOB)} offen sc1")
    a(f"buffer_store_dwordx4 v[32:35], {v(vOB)}, {s(rWS,4)}, {s(sOB)} offen offset:1024 sc1")
    for r in range(2):
        for i in range(3): a.lds(f"ds_write_b32 {v(vWL)}, v32 offset:{L_+(12*r+i)*256}")
    def g_read(ks):
        st = QF + 8*(ks % 4)
        a.lds(f"ds_read_b128 {v(st,4)}, {v(37+(ks&1))} offset:{(ks>>1)*8192}", ("g", ks))
        a.lds(f"ds_read_b128 {v(st+4,4)}, v39 offset:{GW_+ks*64}", ("g", ks))
    for ks in range(3): g_read(ks)
    cq = 0.25 * math.log2(math.e)
    a(f"s_mov_b32 {s(sC0+2)}, {f32(cq)}\ns_mov_b32 {s(sC0+3)}, {f32(cq)}")
    a(f"s_lshr_b32 {s(t0)}, {s(sW)}, 1\ns_lshl_b32 {s(t0)}, {s(t0)}, 2\ns_and_b32 {s(t1)}, {s(sW)}, 1\ns_add_u32 {s(t0)}, {s(t0)}, {s(t1)}\ns_lshl_b32 {s(t0)}, {s(t0)}, 10")
    a(f"v_lshl_add_u32 v36, v0, 4, {s(t0)}")
    for i in range(0, 16, 2): a(f"v_pk_mul_f32 {v(QA+i,2)}, {v(QA+i,2)}, {s(sC0+2,2)}")
    for i in range(8): a(f"v_cvt_pk_bf16_f32 {v(QA+i)}, {v(QA+2*i)}, {v(QA+2*i+1)}")
    a.lds(f"ds_write_b128 v36, {v(QA,4)} offset:{Q_}"); a.lds(f"ds_write_b128 v36, {v(QA+4,4)} offset:{Q_+2048}")
    a("v_mov_b32 v24, 1")
    a.lds(f"ds_add_u32 {v(vL4)}, v24 offset:{CA_}")
    z = 28
    for ks in range(16):
        if ks + 3 < 16: g_read(ks + 3)
        st = QF + 8*(ks % 4)
        a.wait(lg=("g", ks))
        a(f"v_mfma_f32_16x16x32_bf16 {v(z,4)}, {v(st+4,4)}, {v(st,4)}, {v(z,4) if ks else 0}")
    lds_wait(vL4, CA_, 4, 25)
    for i in range(4):
        a(f"s_add_u32 {s(t0)}, {s(sW)}, {i+1}\ns_and_b32 {s(t0)}, {s(t0)}, 3\ns_lshl_b32 {s(t0)}, {s(t0)}, 10\nv_lshl_add_u32 v25, v0, 4, {s(t0)}")
        a(f"ds_read_b128 {v(QF+4*i,4)}, v25 offset:{Q_}\nds_read_b128 {v(QF+16+4*i,4)}, v25 offset:{Q_+4096}")
    a(f"v_cvt_pk_bf16_f32 {v(z)}, {v(z)}, {v(z)}\nv_and_b32 {v(z)}, 0xffff0000, {v(z)}")
    a(f"v_mul_f32 {v(z)}, {f32(-math.log2(math.e))}, {v(z)}\nv_exp_f32 {v(z)}, {v(z)}\ns_nop 0\nv_add_f32 {v(z)}, 1.0, {v(z)}\nv_rcp_f32 {v(z)}, {v(z)}\ns_nop 0")
    a(f"v_cvt_pk_bf16_f32 {v(z)}, {v(z)}, {v(z)}\nv_and_b32 {v(z)}, 0xffff0000, {v(z)}\nv_sub_f32 {v(z+1)}, 1.0, {v(z)}")
    a(f"v_cvt_pk_bf16_f32 {v(z+1)}, {v(z+1)}, {v(z+1)}\nv_and_b32 {v(z+1)}, 0xffff0000, {v(z+1)}")
    a(f"s_lshl_b32 {s(t0)}, {s(sW)}, 6\nv_and_b32 v25, 15, v0\nv_lshl_add_u32 v25, v25, 2, {s(t0)}")
    a(f"ds_write_b32 v25, {v(z)} offset:{G_}\nds_write_b32 v25, {v(z+1)} offset:{G1_}")
    flag_voff(26, 27)
    a(f"s_lshl_b32 {s(t3)}, {s(sW)}, 10\ns_add_u32 {s(t3)}, {s(t3)}, {FKV}")
    a(f"s_and_b32 {s(t0)}, {s(sW)}, 1\ns_lshl_b32 {s(t0)}, {s(t0)}, 7\nv_and_b32 v27, 31, v0\nv_lshl_add_u32 v27, v27, 2, {s(t0)}")
    a(f"s_waitcnt vmcnt(0)\nds_add_u32 {v(vL4)}, v24 offset:{CA_}")
    stamp(3)
    spin_init(); a.label("L_kvpoll")
    a(f"buffer_load_dword v25, v26, {s(rWS,4)}, {s(t3)} offen sc1\ns_waitcnt vmcnt(0)")
    a(f"v_cmp_ne_u32 vcc, {s(sTAG)}, v25")
    spin_back("L_kvpoll", 1)
    stamp(4)
    def kv_load(sl):
        a(f"buffer_load_dwordx4 {v(KVR+12*sl,4)}, {v(vKo)}, {s(rWS,4)}, {s(sKVo)} offen sc1")
        a(f"s_mov_b64 exec, {s(sC0,2)}")
        a(f"buffer_load_dwordx4 {v(KVR+12*sl+4,4)}, {v(vVo)}, {s(rWS,4)}, {s(sKVo)} offen offset:1024 sc1")
        a(f"buffer_load_dwordx4 {v(KVR+12*sl+8,4)}, {v(vVo)}, {s(rWS,4)}, {s(sKVo)} offen offset:1536 sc1")
        a(f"s_mov_b64 exec, -1\ns_add_u32 {s(sKVo)}, {s(sKVo)}, 2048\ns_and_b32 {s(sKVo)}, {s(sKVo)}, 0x7fff")
    for sl in range(3): kv_load(sl)
    lds_wait(vL4, CA_, 8, 25)
    a(f"ds_read_b32 {v(vG)}, v27 offset:{G_}")
    a("s_setprio 1")
    QK = lambda dst, c, k: f"v_mfma_f32_32x32x16_bf16 {v(dst,16)}, {v(KVR+12*k,4)}, {v(QF+4*c,4)}, 0"
    PV0 = lambda src, c, k: f"v_smfmac_f32_32x32x32_bf16 {v(O+16*c,16)}, {v(KVR+12*k+4,4)}, {v(src,8)}, {v(vIDX)}"
    PV1 = lambda src, c, k: f"v_smfmac_f32_32x32x32_bf16 {v(O+16*c,16)}, {v(KVR+12*k+8,4)}, {v(src+8,8)}, {v(vIDX)}"
    def tile(n, prev, cur, nxt, ev):
        cb, ob = (S0, S1) if n % 2 == 0 else (S1, S0)
        for k in range(16):
            for f in ev.get(k, []): f()
            if k == 2: a(PV1(ob, *prev))
            if k == 5 and nxt: a(QK(ob, *nxt))
            if k == 10: a(PV0(cb, *cur))
            a(f"v_exp_f32 {v(cb+k)}, {v(cb+k)}")
    def flush(c):
        r, i = c >> 2, c & 3
        ob = (O1_, RING_)[r] + i*2048
        a(f"ds_write_b128 {v(vWO)}, {v(O+16*c,4)} offset:{ob}\nds_write_b128 {v(vWO)}, {v(O+16*c+4,4)} offset:{ob+1024}")
        a(f"ds_write_b32 {v(vWL)}, {v(O+16*c+8)} offset:{L_+(12*r+i)*256}")
    def gather(r):
        T = O + 64*r
        for i in range(3): a(f"ds_read_b32 {v(T+16*i+8)}, {v(vRL+i)} offset:{L_+12*r*256}")
        if r == 0: a(f"ds_read_b32 {v(T+9)}, {v(vL4)} offset:{CB_}")
        for i in range(3):
            for hf in range(2): a(f"ds_read_b128 {v(T+16*i+4*hf,4)}, {v(vRO+i)} offset:{(O1_, RING_)[r]+hf*1024}")
    def gcheck(r):
        T = O + 64*r
        a(f"s_waitcnt lgkmcnt(0)\nv_max3_u32 {v(T+10)}, {v(T+8)}, {v(T+24)}, {v(T+40)}")
        if r == 0: a(f"v_max_u32 {v(T+10)}, {v(T+10)}, {v(T+9)}")
        a(f"v_cmp_le_u32 vcc, -16, {v(T+10)}")
    def acc9(d, x):
        for i in range(0, 8, 2): a(f"v_pk_add_f32 {v(d+i,2)}, {v(d+i,2)}, {v(x+i,2)}")
        a(f"v_add_f32 {v(d+8)}, {v(d+8)}, {v(x+8)}")
    def finish(r):
        T = O + 64*r; W = T + 48
        gcheck(r)
        a(f"s_cbranch_vccnz L_retry{r}"); a.label(f"L_got{r}")
        acc9(T, T+16); acc9(T, T+32); acc9(W, T)
        lo = (127 + P["LO"]) << 23; hi = (127 + P["HI"]) << 23
        a(f"v_subrev_u32 {v(T)}, {hex(lo)}, {v(W+8)}\nv_cmp_le_u32 vcc, {hex(0 if P['FORCE_SLOW'] else hi-lo)}, {v(T)}")
        a(f"s_cbranch_vccnz L_slow{r}"); a.label(f"L_back{r}")
        a(f"v_rcp_f32 {v(T)}, {v(W+8)}\ns_nop 0\nv_mul_f32 {v(T)}, {v(T)}, {v(vG)}")
        for i in range(0, 8, 2): a(f"v_pk_mul_f32 {v(W+i,2)}, {v(W+i,2)}, {v(T,2)} op_sel_hi:[1,0]")
        for i in range(4): a(f"v_cvt_pk_bf16_f32 {v(W+i)}, {v(W+2*i)}, {v(W+2*i+1)}")
        a(f"v_min_u32 {v(W)}, -2, {v(W)}")
        a(f"buffer_store_dwordx4 {v(W,4)}, {v(vOB)}, {s(rWS,4)}, {s(sOB)} offen offset:{r*1024} sc1")
    a("s_waitcnt vmcnt(6)")
    if P.get("NOATT"): a("s_sleep 127\ns_sleep 127\ns_sleep 127")
    a(QK(S0, 0, 0)); a(f"s_mov_b32 {s(t0)}, 3\ns_nop 10")
    stamp(5)
    a(".p2align 3")
    a.label("L_att")
    seq = [(c, k) for k in range(4) for c in range(8)]
    for n, cur in enumerate(seq):
        ev = {}
        if cur[0] == 0: ev[12] = [lambda: kv_load((cur[1] + 3) % 4)]
        if cur[0] == 7: ev[5] = [lambda: a("s_waitcnt vmcnt(6)")]
        tile(n, seq[n-1], cur, seq[(n+1) % 32], ev)
    a(f"s_sub_u32 {s(t0)}, {s(t0)}, 1\ns_cmp_lg_u32 {s(t0)}, 0\ns_cbranch_scc1 L_att")
    stamp(6)
    seq = [(0,0),(0,1),(0,2),(1,0),(1,1),(1,2),(0,3),(1,3)] + [(c, k) for c in range(2, 8) for k in range(4)]
    for n, cur in enumerate(seq):
        ev = {}
        prev = seq[n-1] if n else (7, 3)
        if n == 0: ev[5] = [lambda: a("s_waitcnt vmcnt(0)")]; ev[12] = [lambda: kv_load(3)]
        if cur == (1, 2): ev[5] = [lambda: a("s_waitcnt vmcnt(0)")]
        if n and prev[1] == 3:
            ev[13] = [(lambda: finish(0)) if prev[0] == 3 else (lambda: flush(prev[0]))]
        if cur in ((3, 3), (7, 3)): ev[7] = [lambda: gather(cur[0] >> 2)]
        tile(n, prev, cur, seq[n+1] if n < 31 else None, ev)
    a("s_nop 1")
    a(PV1(S1, 7, 3))
    finish(1)
    a("s_barrier")
    stamp(7); stamp_out()
    a("s_endpgm")
    for r in range(2):
        a.label(f"L_retry{r}"); spin_init(); a.label(f"L_retryl{r}")
        gather(r); gcheck(r); spin_back(f"L_retryl{r}")
        a(f"s_branch L_got{r}")

    a.label("L_B")
    a.reset()
    vW, vTr, vXb, vL16, vL4, vTr0, vGs = 3, 1, 6, 10, 11, 12, 13
    ACC, WF, XB, TM = 16, 112, 160, 192
    sRING, sBLK, sOOB, sU = 80, 81, 82, 83
    a(f"s_lshl_b32 {s(sRING)}, {s(sW)}, 14\ns_add_u32 {s(sRING)}, {s(sRING)}, {RING_}")
    a(f"v_lshlrev_b32 {v(vL16)}, 4, v0\nv_lshlrev_b32 {v(vL4)}, 2, v0")
    a(f"s_lshl_b32 {s(t0)}, {s(sCG)}, 2\ns_add_u32 {s(sU)}, {s(t0)}, {s(sW)}")
    srd(a, rA, pW1, 512*2752); srd(a, rB, pW3, 512*2752)
    a(f"s_mul_i32 {s(t0)}, {s(sU)}, 96")
    for q in range(3):
        a(f"v_add_u32 v16, {64*q}, v0\nv_mul_u32_u24 v17, 10923, v16\nv_lshrrev_b32 v17, 16, v17\nv_mul_u32_u24 v18, 6, v17\nv_sub_u32 v18, v16, v18")
        a(f"v_mul_u32_u24 v17, 2752, v17\nv_lshl_add_u32 v17, v18, 4, v17\nv_add_u32 {v(vW+q)}, {s(t0)}, v17")
    a(f"s_mul_i32 {s(sBLK)}, {s(sROT)}, {64*2752}\ns_mul_i32 {s(t5)}, {s(sW)}, 6400")
    def w13_issue(base, off, part, soff):
        r = rA if part < 3 else rB
        a(f"s_add_u32 m0, {s(base)}, {off + (part//3)*W3OFF + (part%3)*1024}\ns_nop 0")
        a(f"buffer_load_dwordx4 {v(vW + part%3)}, {s(r,4)}, {s(soff)} offen lds")
    def blk_next():
        a(f"s_add_u32 {s(sBLK)}, {s(sBLK)}, {32*2752}\ns_cmp_eq_u32 {s(sBLK)}, {512*2752}\ns_cselect_b32 {s(sBLK)}, 0, {s(sBLK)}")
    def blk_issue(base, off):
        for p in range(6): w13_issue(base, off, p, sBLK)
        blk_next()
    a(f"s_cmp_eq_u32 {s(sCG)}, 7\ns_cbranch_scc1 L_B0")
    blk_issue(t5, 0)
    a.label("L_B0")
    a(f"s_mul_i32 {s(t0)}, {s(sTG)}, {HSTRIDE}\ns_add_u32 {s(t0)}, {s(t0)}, {HBUF}")
    srd(a, rH, pWS, 86*2048, off=s(t0))
    srd(a, rW2, pGW, 1024)
    a(f"s_lshl_b32 {s(t2)}, {s(sROT)}, 3\nv_add_u32 v16, {s(t2)}, v0\nv_and_b32 v16, 63, v16\nv_lshlrev_b32 {v(vGs)}, 4, v16")
    a.c("w1 / w3 transpose-read address: grp*3200 + (8h+r)*96 + c*8")
    a(f"v_lshrrev_b32 v16, 5, v0\nv_lshlrev_b32 v16, 3, v16\nv_bfe_u32 v17, v0, 2, 2\nv_add_u32 v16, v16, v17\nv_mul_u32_u24 v16, 96, v16")
    a(f"v_and_b32 v17, 3, v0\nv_lshl_add_u32 v16, v17, 3, v16\nv_bfe_u32 v17, v0, 4, 1\nv_mul_u32_u24 v17, {W3OFF}, v17")
    a(f"v_add3_u32 {v(vTr)}, v16, v17, {s(sRING)}\nv_add3_u32 {v(vTr0)}, v16, v17, {s(t5)}")
    x32_addr(vXb, 16, X_)
    a(f"v_mov_b32 {v(TM)}, 0\nv_mov_b32 {v(TM+1)}, 0\nv_mov_b32 {v(TM+2)}, -8\ns_nop 0")
    for i in range(6): a(f"v_mfma_f32_32x32x8bf16_1k {v(ACC+16*i,16)}, {v(TM,2)}, {v(TM,2)}, 0")
    def gw_and_counters():
        a(f"s_mov_b32 m0, {GW_}\nds_write_b32 {v(vL4)}, {v(TM)} offset:{CA_}\nds_write_b32 {v(vL4)}, {v(TM+2)} offset:{CB_}")
        a(f"buffer_load_dwordx4 {v(vGs)}, {s(rW2,4)}, 0 offen lds")
    def trs(st, addr, off):
        return [f"ds_read_b64_tr_b16 {v(WF+24*st+12*ks+4*u+2*rd,2)}, {v(addr)} offset:{off + ks*1536 + rd*384 + u*32}"
                for ks in range(2) for u in range(3) for rd in range(2)]
    def xrs(st, off):
        return [f"ds_read_b128 {v(XB+16*st+8*ks+4*t,4)}, {v(vXb+2*st+ks)} offset:{off + t*4096}" for ks in range(2) for t in range(2)]
    a(f"s_cmp_eq_u32 {s(sCG)}, 7\ns_cbranch_scc1 L_Bp")
    a("s_waitcnt vmcnt(12) lgkmcnt(0)\ns_barrier")
    tag_from_epoch()
    stamp(1)
    gw_and_counters()
    for x in xrs(0, 0): a(x)
    a("s_waitcnt vmcnt(7) lgkmcnt(0)\ns_barrier")
    blk_issue(sRING, SLOTOFF[1])
    a("s_waitcnt vmcnt(6)")
    for x in trs(0, vTr0, 0): a(x)
    a("s_waitcnt lgkmcnt(0)\ns_barrier\ns_branch L_B2")

    a.label("L_Bp")
    a.c("producer: K and V of 16 tokens per wave")
    pT, pX_, pA, KA, VA, F = 200, 202, 204, 208, 212, 112
    narrow_tr(pT, 216)
    a(f"v_xor_b32 {v(pT+1)}, 128, {v(pT)}")
    x16_addr(pX_, 216)
    a(f"s_lshl_b32 {s(t0)}, {s(sW)}, 11\ns_add_u32 {s(t0)}, {s(t0)}, {X_}\nv_add_u32 {v(pX_)}, {s(t0)}, {v(pX_)}\nv_xor_b32 {v(pX_+1)}, 64, {v(pX_)}")
    a.c("publish address: even lane rows K, odd lane rows V")
    a(f"v_and_b32 v216, 15, v0\nv_lshlrev_b32 v216, 4, v216\nv_lshrrev_b32 v217, 5, v0")
    a(f"s_and_b32 {s(t0)}, {s(sW)}, 1\ns_lshl_b32 {s(t1)}, {s(t0)}, 8\ns_lshl_b32 {s(t0)}, {s(t0)}, 9\ns_add_u32 {s(t0)}, {s(t0)}, 1024")
    a(f"v_lshl_add_u32 v218, v217, 9, {s(t1)}\nv_lshl_add_u32 v219, v217, 8, {s(t0)}\nv_and_b32 v217, 16, v0\nv_cmp_ne_u32 vcc, 0, v217\ns_nop 1\nv_cndmask_b32 v218, v218, v219, vcc\nv_add_u32 {v(pA)}, v216, v218")
    a(f"s_lshl_b32 {s(t4)}, {s(sTG)}, 1\ns_lshr_b32 {s(t0)}, {s(sW)}, 1\ns_add_u32 {s(t4)}, {s(t4)}, {s(t0)}\ns_lshl_b32 {s(t4)}, {s(t4)}, 11\ns_add_u32 {s(t4)}, {s(t4)}, {KV}")
    a(f"s_lshl_b32 {s(t3)}, {s(sTG)}, 7\ns_lshl_b32 {s(t0)}, {s(sW)}, 2\ns_add_u32 {s(t3)}, {s(t3)}, {s(t0)}\ns_add_u32 {s(t3)}, {s(t3)}, {FKV}")
    a("s_waitcnt vmcnt(14) lgkmcnt(0)\ns_barrier")
    tag_from_epoch()
    stamp(1)
    def kvp_read(ks):
        st = F + 12*(ks % 4)
        a.lds(f"ds_read_b128 {v(st,4)}, {v(pX_+(ks&1))} offset:{(ks>>1)*8192}", ("f", ks))
        for m in range(2):
            for rd in range(2):
                a.lds(f"ds_read_b64_tr_b16 {v(st+4+4*m+2*rd,2)}, {v(pT+rd)} offset:{ks*2048+m*1024}", ("f", ks))
    def kvp_mfma(ks):
        st = F + 12*(ks % 4)
        a.wait(lg=("f", ks))
        a(f"v_mfma_f32_16x16x32_bf16 {v(KA,4)}, {v(st+4,4)}, {v(st,4)}, {v(KA,4) if ks else 0}")
        a(f"v_mfma_f32_16x16x32_bf16 {v(VA,4)}, {v(st,4)}, {v(st+8,4)}, {v(VA,4) if ks else 0}")
    for hf in range(2):
        if hf: a("s_waitcnt vmcnt(8)\ns_barrier")
        for ks in range(8*hf, 8*hf+3): kvp_read(ks)
        for ks in range(8*hf, 8*hf+8):
            if ks + 3 < 8*hf+8: kvp_read(ks + 3)
            kvp_mfma(ks)
    a(f"v_mov_b32 v220, {s(sTAG)}\ns_nop 5")
    a(f"v_cvt_pk_bf16_f32 v216, {v(KA)}, {v(KA+1)}\nv_cvt_pk_bf16_f32 v217, {v(KA+2)}, {v(KA+3)}")
    a(f"v_cvt_pk_bf16_f32 v218, {v(VA)}, {v(VA+1)}\nv_cvt_pk_bf16_f32 v219, {v(VA+2)}, {v(VA+3)}\ns_nop 1")
    a("v_permlane16_swap_b32 v216, v218\nv_permlane16_swap_b32 v217, v219")
    a(f"buffer_store_dwordx4 v[216:219], {v(pA)}, {s(rWS,4)}, {s(t4)} offen sc1")
    stamp(13)
    a("s_waitcnt vmcnt(4)\ns_barrier")
    gw_and_counters()
    a("s_waitcnt vmcnt(1)")
    a(f"s_mov_b64 exec, 1\nbuffer_store_dword v220, {v(TM)}, {s(rWS,4)}, {s(t3)} offen sc1\ns_mov_b64 exec, -1")
    stamp(2)
    a("s_waitcnt lgkmcnt(0)\ns_barrier\ns_waitcnt vmcnt(1)\ns_barrier")
    a(f"s_cmp_lg_u32 {s(sW)}, 0\ns_cbranch_scc1 L_Bh")
    blk_issue(sRING, SLOTOFF[0]); blk_issue(sRING, SLOTOFF[1])
    for x in xrs(0, 0): a(x)
    a("s_waitcnt vmcnt(6)")
    for x in trs(0, vTr, SLOTOFF[0]): a(x)
    a("s_waitcnt lgkmcnt(0)")
    a.label("L_B2")
    if P.get("SKIP1"): a("s_branch L_Bh")
    cyc(40)
    a(f"s_mov_b32 {s(t0)}, 8\ns_mov_b32 {s(sOOB)}, {s(sBLK)}")
    a(".p2align 3")
    a.label("L_ffn1")
    for st in range(2):
        M = [f"v_mfma_f32_32x32x16_bf16 {v(ACC+16*(2*u+t),16)}, {v(WF+24*st+12*ks+4*u,4)}, {v(XB+16*st+8*ks+4*t,4)}, {v(ACC+16*(2*u+t),16)}"
             for ks in range(2) for u in range(3) for t in range(2)]
        T = trs(st ^ 1, vTr, SLOTOFF[st ^ 1]); XR = xrs(st ^ 1, 8192 if st else 0)
        for k in range(3):
            a(M[k]); w13_issue(sRING, SLOTOFF[st], 2*k, sOOB); w13_issue(sRING, SLOTOFF[st], 2*k+1, sOOB)
        for x in XR: a(x)
        a(M[3]); a("s_waitcnt vmcnt(6)")
        for k in range(4):
            for x in T[3*k:3*k+3]: a(x)
            a(M[4+k])
        blk_next()
        if st == 1: a(f"s_sub_u32 {s(t0)}, {s(t0)}, 1")
        a(f"s_cmp_gt_u32 {s(t0)}, 1\ns_cselect_b32 {s(sOOB)}, {s(sBLK)}, 0x7ff00000")
        a(M[8])
        if st == 1:
            a("s_setprio 2")
            for j in range(4): a(f"v_add_u32 {v(vXb+j)}, 0x2000, {v(vXb+j)}")
            a("s_setprio 0")
        a(M[9]); a(M[10]); a(M[11])
        a("s_waitcnt lgkmcnt(0)")
    if P["STAMP"]:
        a(f"s_memtime s[100:101]\ns_add_u32 m0, {s(t0)}, 32\ns_setprio 2\ns_waitcnt lgkmcnt(0)\nv_writelane_b32 v{VST}, s100, m0\ns_setprio 0")
    a(f"s_cmp_lg_u32 {s(t0)}, 0\ns_cbranch_scc1 L_ffn1")
    stamp(3)
    a.c("SwiGLU epilogue")
    a(f"s_setprio 2\ns_mov_b32 {s(sC0)}, {f32(-math.log2(math.e))}\ns_mov_b32 {s(sC0+1)}, {s(sC0)}\ns_mov_b32 {s(sC0+2)}, 1.0\ns_mov_b32 {s(sC0+3)}, 1.0")
    a(f"s_mul_i32 {s(t0)}, {s(sU)}, {3*2048}")
    for u in range(3):
        for t in range(2):
            A_ = ACC + 16*(2*u+t)
            for i in range(0, 8, 2): a(f"v_pk_mul_f32 {v(TM+i,2)}, {v(A_+i,2)}, {s(sC0,2)}")
            for i in range(8): a(f"v_exp_f32 {v(TM+i)}, {v(TM+i)}")
            for i in range(0, 8, 2): a(f"v_pk_mul_f32 {v(A_+i,2)}, {v(A_+i,2)}, {v(A_+8+i,2)}")
            for i in range(0, 8, 2): a(f"v_pk_add_f32 {v(TM+i,2)}, {v(TM+i,2)}, {s(sC0+2,2)}")
            for i in range(8): a(f"v_rcp_f32 {v(TM+i)}, {v(TM+i)}")
            for i in range(0, 8, 2): a(f"v_pk_mul_f32 {v(A_+i,2)}, {v(A_+i,2)}, {v(TM+i,2)}")
            for i in range(4): a(f"v_cvt_pk_bf16_f32 {v(A_+8+i)}, {v(A_+2*i)}, {v(A_+2*i+1)}")
            a(f"buffer_store_dwordx4 {v(A_+8,4)}, {v(vL16)}, {s(rH,4)}, {s(t0)} offen offset:{t*1024} sc1")
        if u < 2: a(f"s_add_u32 {s(t0)}, {s(t0)}, 2048")
    a.label("L_Bh")
    a.reset(); a.vm = ["st"]
    a("s_setprio 2")
    stamp(4)
    vT2, vONE = 3, 5
    srd(a, rW2, pW2, 1376*1024); srd(a, rWO, pWO, 512*1024)
    sW2o, sW2b, sW2e, sHo, sHb, sHe = 84, 85, 86, 87, 88, 89
    a(f"s_mul_i32 {s(t0)}, {s(sROT)}, 11\ns_lshr_b32 {s(t0)}, {s(t0)}, 2\ns_mul_i32 {s(t1)}, {s(sW)}, 22\ns_add_u32 {s(t0)}, {s(t0)}, {s(t1)}")
    a(f"s_lshl_b32 {s(sW2o)}, {s(t0)}, 14\ns_lshl_b32 {s(sW2b)}, {s(t1)}, 14\ns_add_u32 {s(sW2e)}, {s(sW2b)}, {22<<14}")
    a(f"s_lshl_b32 {s(sHo)}, {s(t0)}, 11\ns_lshl_b32 {s(sHb)}, {s(t1)}, 11\ns_add_u32 {s(sHe)}, {s(sHb)}, {22<<11}")
    NS, D2 = 22, 8
    ACC2, HF, W2F = 16, 80, 144
    def w2_issue(sg):
        a(f"s_add_u32 m0, {s(sRING)}, {(sg % D2)*2048}\ns_add_u32 {s(t0)}, {s(sW2o)}, 8192")
        dma(vD, rW2, s(sW2o), ("w2", sg))
        a(f"s_add_u32 m0, {s(sRING)}, {(sg % D2)*2048 + 1024}\ns_add_u32 {s(sW2o)}, {s(sW2o)}, 16384")
        dma(vD, rW2, s(t0), ("w2", sg))
        a(f"s_cmp_eq_u32 {s(sW2o)}, {s(sW2e)}\ns_cselect_b32 {s(sW2o)}, {s(sW2b)}, {s(sW2o)}")
    def h_issue(sg):
        for t in range(2):
            a.vmem(f"buffer_load_dwordx4 {v(HF+8*(sg%D2)+4*t,4)}, {v(vL16)}, {s(rH,4)}, {s(sHo)} offen offset:{t*1024} sc1", ("h", sg))
        a(f"s_add_u32 {s(sHo)}, {s(sHo)}, 2048\ns_cmp_eq_u32 {s(sHo)}, {s(sHe)}\ns_cselect_b32 {s(sHo)}, {s(sHb)}, {s(sHo)}")
    for sg in range(D2): w2_issue(sg)
    a.c("w2 transpose-read: row 4h+r, chunk 4cu+2grp+(c>>1), sub c&1")
    a(f"v_lshrrev_b32 {v(TM)}, 5, v0\nv_bfe_u32 {v(TM+1)}, v0, 2, 2\nv_lshl_add_u32 {v(TM)}, {v(TM)}, 2, {v(TM+1)}\nv_lshlrev_b32 {v(TM)}, 7, {v(TM)}")
    a(f"v_bfe_u32 {v(TM+1)}, v0, 4, 1\nv_lshl_add_u32 {v(TM)}, {v(TM+1)}, 5, {v(TM)}\nv_and_b32 {v(TM+1)}, 3, v0\nv_lshl_add_u32 {v(TM)}, {v(TM+1)}, 3, {v(TM)}")
    a(f"v_and_b32 {v(TM+1)}, 8, v0\nv_lshl_add_u32 {v(TM)}, {v(TM+1)}, 3, {v(TM)}\nv_add_u32 {v(vT2)}, {s(sRING)}, {v(TM)}\nv_xor_b32 {v(vT2+1)}, 64, {v(vT2)}")
    a(f"v_mov_b32 {v(vONE)}, 1\nv_mov_b32 v7, 1\nv_mov_b32 v8, 0\nv_mov_b32 v9, {s(sTAG)}")
    flag_voff(6, TM)
    a(f"s_lshl_b32 {s(t0)}, {s(sTG)}, 10\ns_add_u32 {s(t3)}, {s(t0)}, {FH}\ns_lshl_b32 {s(t0)}, {s(sCG)}, 7\ns_lshl_b32 {s(t1)}, {s(sW)}, 2\ns_add_u32 {s(t0)}, {s(t0)}, {s(t1)}\ns_add_u32 {s(t2)}, {s(t0)}, {s(t3)}")
    lds_wait(vL4, CA_, 8, TM, 1)
    a.wait(vm="st")
    a(f"s_mov_b64 exec, 1\nbuffer_store_dword v9, v8, {s(rWS,4)}, {s(t2)} offen sc1\ns_mov_b64 exec, -1")
    stamp(5)
    spin_init(); a.label("L_hpoll")
    a(f"buffer_load_dword {v(TM)}, v6, {s(rWS,4)}, {s(t3)} offen sc1\ns_waitcnt vmcnt(0)")
    a(f"v_cmp_ne_u32 vcc, {s(sTAG)}, {v(TM)}")
    spin_back("L_hpoll", 4)
    a.reset()
    stamp(6)
    a("s_setprio 0")
    for sg in range(D2): h_issue(sg)
    def w2_pull(sg):
        a.wait(vm=("w2", sg))
        for cu in range(2):
            for rd in range(2):
                a.lds(f"ds_read_b64_tr_b16 {v(W2F+8*(sg&1)+4*cu+2*rd,2)}, {v(vT2+cu)} offset:{(sg%D2)*2048 + rd*1024}", ("t", sg))
    a(f"s_lshl_b32 {s(t4)}, {s(sW)}, 14\ns_add_u32 {s(t4)}, {s(t4)}, {X_}\ns_lshl_b32 {s(t5)}, {s(sW)}, 17\ns_lshl_b32 {s(t3)}, {s(sROT)}, 11")
    def wo_issue():
        a(f"s_add_u32 m0, {s(t4)}, {s(t3)}\ns_lshl3_add_u32 {s(t0)}, {s(t3)}, {s(t5)}")
        dma(vD, rWO, s(t0), "wo")
        a(f"s_add_u32 {s(t3)}, {s(t3)}, 1024\ns_and_b32 {s(t3)}, {s(t3)}, 0x3fff")
    w2_pull(0)
    a.wait(lg=("t", 0))
    w2_issue(D2)
    wo_n = 0
    for sg in range(NS):
        if sg + 1 < NS: w2_pull(sg + 1)
        a.wait(vm=("h", sg))
        for cu in range(2):
            for t in range(2):
                d = ACC2 + 16*(2*cu+t)
                a(f"v_mfma_f32_32x32x16_bf16 {v(d,16)}, {v(W2F+8*(sg&1)+4*cu,4)}, {v(HF+8*(sg%D2)+4*t,4)}, {v(d,16) if sg else 0}")
        if sg + D2 < NS: h_issue(sg + D2)
        if sg + 1 < NS: a.wait(lg=("t", sg + 1))
        if sg + 1 + D2 < NS: w2_issue(sg + 1 + D2)
        else:
            for _ in range(2):
                if wo_n < 16: wo_issue(); wo_n += 1
    assert wo_n == 16
    stamp(7)
    a.c("dump partial sums, reduce across the four B waves into 16-token ownership")
    a(f"s_setprio 2\nv_and_b32 v12, 31, v0\nv_lshlrev_b32 v12, 4, v12\nv_lshrrev_b32 v13, 5, v0\nv_lshl_add_u32 v12, v13, 10, v12\nv_add_u32 v12, {s(sRING)}, v12")
    a(f"v_and_b32 v14, 15, v0\nv_lshrrev_b32 v13, 4, v0\nv_lshlrev_b32 v13, 11, v13\nv_lshl_add_u32 v13, v14, 4, v13")
    a(f"s_lshl_b32 {s(t0)}, {s(sW)}, 8\ns_add_u32 {s(t0)}, {s(t0)}, {RING_}\nv_add_u32 v13, {s(t0)}, v13")
    a(f"s_lshl_b32 {s(t0)}, {s(sW)}, 6\nv_lshl_add_u32 v6, v14, 2, {s(t0)}")
    for cu in range(2):
        for t in range(2):
            for qd in range(4):
                a(f"ds_write_b128 v12, {v(ACC2+16*(2*cu+t)+4*qd,4)} offset:{cu*8192+qd*2048+t*512}")
    a.wait_all(lg=False)
    a(f"ds_add_u32 {v(vL4)}, {v(vONE)} offset:{CB_}")
    a.c("epoch hand-over: the last workgroup to get here stores the new epoch")
    a(f"s_cmp_lg_u32 {s(sW)}, 3\ns_cbranch_scc1 L_B4")
    srd(a, rDBG, pDBG, 256)
    a(f"s_mov_b64 exec, 1\nbuffer_atomic_add v7, v8, {s(rDBG,4)}, 0 offen sc0 sc1\ns_mov_b64 exec, -1")
    a.label("L_B4")
    a.c("wo transpose-read: row 16*(kg>>1) + 4*(kg&1) + r, chunk 4*a2 + c")
    vT3 = 3
    a(f"v_lshrrev_b32 v80, 5, v0\nv_lshlrev_b32 v80, 4, v80\nv_bfe_u32 v81, v0, 2, 3\nv_add_u32 v80, v80, v81\nv_lshlrev_b32 v80, 7, v80")
    a(f"v_and_b32 v81, 3, v0\nv_lshl_add_u32 v80, v81, 4, v80\nv_and_b32 v81, 8, v0\nv_lshl_add_u32 v80, v81, 3, v80")
    a(f"v_add_u32 {v(vT3)}, {X_}, v80\nv_xor_b32 {v(vT3+1)}, 64, {v(vT3)}")
    spin_init(); a.label("L_bsync")
    a(f"ds_read_b32 v80, {v(vL4)} offset:{CB_}\ns_waitcnt lgkmcnt(0)\nv_cmp_gt_i32 vcc, -4, v80")
    spin_back("L_bsync", 1)
    a.reset()
    AO, RT, OF, WOF = 16, 32, 96, 128
    for src in range(4):
        for ac in range(4):
            a.lds(f"ds_read_b128 {v(AO+16*src+4*ac,4)}, v13 offset:{src*16384+(ac>>1)*8192+(ac&1)*1024}", ("r", src))
    a.lds(f"ds_add_u32 {v(vL4)}, {v(vONE)} offset:{CB_}")
    a.lds(f"ds_read_b32 v80, v6 offset:{G1_}", "g1")
    for src in range(1, 4):
        a.wait(lg=("r", src))
        for i in range(0, 16, 2): a(f"v_pk_add_f32 {v(AO+i,2)}, {v(AO+i,2)}, {v(AO+16*src+i,2)}")
    a.wait(lg="g1")
    for i in range(0, 16, 2): a(f"v_pk_mul_f32 {v(AO+i,2)}, {v(AO+i,2)}, v[80:81] op_sel_hi:[1,0]")
    def wo_pull(r):
        for ci in range(8):
            for ac in range(4):
                for rd in range(2):
                    a(f"ds_read_b64_tr_b16 {v(WOF+16*ci+4*ac+2*rd,2)}, {v(vT3+(ac>>1))} offset:{(2*ci+r)*4096+rd*1024+(ac&1)*8}")
    wo_pull(0)
    sOr = 84
    a(f"s_lshl_b32 {s(t0)}, {s(sTG)}, 16\ns_lshl_b32 {s(t1)}, {s(sW)}, 14\ns_add_u32 {s(t0)}, {s(t0)}, {s(t1)}")
    for i in range(4): a(f"s_add_u32 {s(sOr+i)}, {s(t0)}, {OBUF + i*4096}")
    srd(a, rOUT, pOUT, 2048*1024)
    a(f"s_lshl_b32 {s(t1)}, {s(sCG)}, 7\ns_add_u32 {s(t4)}, {s(t0)}, {s(t1)}")
    a(f"v_and_b32 v13, 48, v0\nv_lshl_add_u32 v13, v14, 10, v13\ns_mul_i32 {s(t0)}, {s(sW)}, 768\nv_add_u32 v6, {s(t0)}, {v(vL4)}")
    stamp(8)
    a.c("wait until the partner A wave is past its first o tile")
    spin_init(); a.label("L_r1wait")
    a(f"ds_read_b32 v80, v6 offset:{L_+12*256}\ns_waitcnt lgkmcnt(0)\nv_cmp_eq_u32 vcc, -1, v80")
    spin_back("L_r1wait", 2)
    stamp(9)
    def o_round(r, sleep):
        lbl = f"L_opoll{r}"
        spin_init(); a.label(lbl)
        for ci in range(8):
            a(f"buffer_load_dwordx4 {v(OF+4*ci,4)}, {v(vL16)}, {s(rWS,4)}, {s(sOr+ci//2)} offen offset:{(ci&1)*2048+r*1024} sc1")
        a("s_waitcnt vmcnt(5)")
        a(f"v_max3_u32 v12, {v(OF)}, {v(OF+4)}, {v(OF+8)}\ns_waitcnt vmcnt(3)\nv_max3_u32 v12, v12, {v(OF+12)}, {v(OF+16)}")
        a(f"s_waitcnt vmcnt(1)\nv_max3_u32 v12, v12, {v(OF+20)}, {v(OF+24)}\ns_waitcnt vmcnt(0) lgkmcnt(0)\nv_max_u32 v12, v12, {v(OF+28)}")
        a("v_cmp_eq_u32 vcc, -1, v12")
        spin_back(lbl, sleep)
        if r == 0: a("s_setprio 0")
        for ci in range(8):
            for ac in range(4):
                a(f"v_mfma_f32_16x16x32_bf16 {v(AO+4*ac,4)}, {v(WOF+16*ci+4*ac,4)}, {v(OF+4*ci,4)}, {v(AO+4*ac,4)}")
    o_round(0, 4)
    stamp(10)
    wo_pull(1)
    a("s_setprio 2")
    a(f"s_cmp_lg_u32 {s(sW)}, 3\ns_cbranch_scc1 L_B5")
    a(f"v_readfirstlane_b32 {s(t0)}, v7\ns_nop 3\ns_cmp_lg_u32 {s(t0)}, 255\ns_cbranch_scc1 L_B5")
    a(f"s_mov_b64 exec, 1\nbuffer_store_dword v9, v8, {s(rWS,4)}, 0 offen sc1\ns_mov_b64 exec, -1")
    a.label("L_B5")
    a("s_barrier")
    stamp(11)
    o_round(1, None)
    a("s_nop 4")
    for i in range(8): a(f"v_cvt_pk_bf16_f32 {v(RT+i)}, {v(AO+2*i)}, {v(AO+2*i+1)}")
    a(f"buffer_store_dwordx4 {v(RT,4)}, v13, {s(rOUT,4)}, {s(t4)} offen")
    a(f"buffer_store_dwordx4 {v(RT+4,4)}, v13, {s(rOUT,4)}, {s(t4)} offen offset:64")
    stamp(12); stamp_out()
    a.label("L_end")
    a("s_endpgm")
    for r in range(2): slow_path(f"L_slow{r}", f"L_back{r}", O + 64*r + 48, QF + 16*r + 12, O + 64*r)

    ref = open("cdna_kernels/" + NAME + ".s.ref").read().split("\n")
    head = [l for l in ref if l.startswith(";") and "@launch" not in l and "Override" not in l and "grid=ceil" not in l]
    out = "\n".join(head) + f"\n; @launch grid=(256,1,1) block=(512,1,1) lds={LDS_BYTES}\n"
    out += f""".amdgcn_target "amdgcn-amd-amdhsa--gfx950"
.text
.globl {NAME}_kernel
.p2align 8
.type {NAME}_kernel,@function
{NAME}_kernel:
"""
    out += a.text()
    out += f""".section .rodata,"a"
.p2align 6
.amdhsa_kernel {NAME}_kernel
  .amdhsa_next_free_vgpr 256
  .amdhsa_next_free_sgpr 102
  .amdhsa_accum_offset 256
  .amdhsa_group_segment_fixed_size 0
  .amdhsa_kernarg_size 104
  .amdhsa_user_sgpr_count 2
  .amdhsa_user_sgpr_kernarg_segment_ptr 1
  .amdhsa_system_sgpr_workgroup_id_x 1
  .amdhsa_float_denorm_mode_32 {P.get('DENORM',3)}
.end_amdhsa_kernel
"""
    errs = check_hazards(a.text())
    for e in errs: print("HAZARD need %d have %d:\n   %d: %s\n   %d: %s" % (e[2], e[3], e[0], e[4], e[1], e[5]), file=sys.stderr)
    return out, errs

if __name__ == "__main__":
    kw = {}
    path = "cdna_kernels/" + NAME + ".s"
    for arg in sys.argv[1:]:
        if "=" in arg:
            k, val = arg.split("=", 1)
            kw[k] = int(val) if val.lstrip("-").isdigit() else val
        else: path = arg
    out, errs = gen(**kw)
    open(path, "w").write(out)
    print("wrote", path, len(out.split("\n")), "lines;", len(errs), "hazards")
```

```python
import sys, struct, math
from asmlib import Asm, v, s, check_hazards

NAME = "gated_mix__grouped_kv_mqa__glu_gated_swiglu__prompt"
def f32(x): return "0x%08x" % struct.unpack("<I", struct.pack("<f", x))[0]

DEFAULT = dict(STAMP=0, MAP="tok", FORCE_SLOW=0, LO=-40, HI=60, SPIN=200000)

Q_, O1_, L_, GW_, G_, G1_, CA_, CB_, RING_, X_ = 0, 0, 24576, 30720, 31744, 32000, 32256, 32512, 32768, 98304
LDS_BYTES = 163840
W3OFF = 3200
SLOTOFF = (8192, 0)
FKV, FH, KV, OBUF, HBUF, STAMPS = 0x1000, 0x2000, 0x10000, 0x100000, 0x400000, 0xA00000
HSTRIDE = 0x2C000
WS_BYTES = 0xB00000
IDX = 0xDDDDDDDD
pX, pWQ, pWK, pWV, pWO, pW1, pW3, pW2, pGW, pOUT, pDBG, pWS = 4, 6, 8, 10, 12, 16, 18, 20, 22, 24, 26, 28
sTAG, sSPIN = 30, 31
rX, rA, rB, rWS, rH, rW2, rWO, rOUT, rDBG = 32, 36, 40, 44, 48, 52, 56, 60, 64
sTG, sCG, sROT, sW, sWV = 68, 69, 70, 71, 72
t0, t1, t2, t3, t4, t5 = 73, 74, 75, 76, 77, 78
sC0 = 96
sKV = 80
VST = 15

def srd(a, r, p, nbytes, off=None):
    if off is None:
        a(f"s_mov_b32 {s(r)}, {s(p)}\ns_mov_b32 {s(r+1)}, {s(p+1)}")
    else:
        a(f"s_add_u32 {s(r)}, {s(p)}, {off}\ns_addc_u32 {s(r+1)}, {s(p+1)}, 0")
    a(f"s_mov_b32 {s(r+2)}, {nbytes}\ns_mov_b32 {s(r+3)}, 0x20000")

def gen(**kw):
    P = dict(DEFAULT); P.update(kw)
    a = Asm()
    def stamp(k):
        if P.get("DIAG") and k == P.get("DIAGM", 0):
            a("s_memrealtime s[94:95]"); a.wait_all(vm=False)
        if P["STAMP"]:
            a("s_memrealtime s[100:101]"); a("s_memtime s[14:15]"); a.wait_all(vm=False)
            a(f"v_writelane_b32 v{VST}, s100, {k}\nv_writelane_b32 v{VST}, s14, {k+16}")
    def cyc(k):
        if P["STAMP"]:
            a("s_memtime s[100:101]"); a.wait_all(vm=False)
            a(f"v_writelane_b32 v{VST}, s100, {k}")
    def stamp_out():
        if P["STAMP"]:
            cyc(15)
            a(f"s_lshl_b32 {s(t0)}, s2, 3\ns_add_u32 {s(t0)}, {s(t0)}, {s(sWV)}\ns_lshl_b32 {s(t0)}, {s(t0)}, 8\ns_add_u32 {s(t0)}, {s(t0)}, {STAMPS}")
            a(f"v_lshlrev_b32 v8, 2, v0\nbuffer_store_dword v{VST}, v8, {s(rWS,4)}, {s(t0)} offen")
    def dma(voff, r, soff, tag, flags=""):
        a.vmem(f"buffer_load_dwordx4 {v(voff)}, {s(r,4)}, {soff} offen lds {flags}".strip(), tag)
    def spin_init(): a(f"s_mov_b32 {s(sSPIN)}, {P['SPIN']}")
    def spin_back(lbl, sleep=None):
        out = a.newlabel("L_ok")
        a(f"s_cbranch_vccz {out}")
        if sleep: a(f"s_sleep {sleep}")
        a(f"s_sub_u32 {s(sSPIN)}, {s(sSPIN)}, 1\ns_cmp_lg_u32 {s(sSPIN)}, 0\ns_cbranch_scc1 {lbl}")
        a.label(out)
    def lds_wait(addr, off, count, tmp, sleep=None):
        lbl = a.newlabel("L_lw"); spin_init(); a.label(lbl)
        a(f"ds_read_b32 {v(tmp)}, {v(addr)} offset:{off}"); a.wait_all(vm=False)
        a(f"v_cmp_gt_u32 vcc, {count}, {v(tmp)}")
        spin_back(lbl, sleep)
    def narrow_src(dst, tmp, shift):
        a.c("32-byte-row DMA source: slot rho=lane>>1 holds row rho ^ (4*((rho>>3)&1))")
        a(f"v_lshrrev_b32 {v(dst)}, 1, v0\nv_lshrrev_b32 {v(tmp)}, 2, v0\nv_and_b32 {v(tmp)}, 4, {v(tmp)}\nv_xor_b32 {v(dst)}, {v(dst)}, {v(tmp)}")
        a(f"v_and_b32 {v(tmp)}, 1, v0\nv_lshlrev_b32 {v(tmp)}, 4, {v(tmp)}\nv_lshl_add_u32 {v(dst)}, {v(dst)}, {shift}, {v(tmp)}")

    if P.get("DIAG"): a("s_memrealtime s[92:93]")
    a("s_cmp_ge_u32 s2, 256\ns_cbranch_scc1 L_end")
    a("s_load_dwordx16 s[4:19], s[0:1], 0\ns_load_dwordx8 s[20:27], s[0:1], 64\ns_load_dwordx2 s[28:29], s[0:1], 96")
    a(f"v_lshrrev_b32 v1, 6, v0\nv_and_b32 v0, 63, v0\nv_readfirstlane_b32 {s(sWV)}, v1")
    if P["MAP"] == "tok":
        a(f"s_and_b32 {s(sTG)}, s2, 31\ns_lshr_b32 {s(t0)}, s2, 5\ns_sub_u32 {s(sCG)}, 7, {s(t0)}")
        a(f"s_lshr_b32 {s(t0)}, {s(sTG)}, 3\ns_lshl_b32 {s(t0)}, {s(t0)}, 1\ns_add_u32 {s(sROT)}, {s(t0)}, {s(sTG)}\ns_add_u32 {s(sROT)}, {s(sROT)}, {s(sCG)}")
    elif P["MAP"] == "col":
        a(f"s_and_b32 {s(sCG)}, s2, 7\ns_lshr_b32 {s(sTG)}, s2, 3\ns_add_u32 {s(sROT)}, {s(sTG)}, {s(sCG)}")
    elif P["MAP"] == "4x2":
        a(f"s_lshr_b32 {s(t0)}, s2, 6\ns_sub_u32 {s(t0)}, 3, {s(t0)}\ns_and_b32 {s(t1)}, s2, 4\ns_add_u32 {s(sCG)}, {s(t0)}, {s(t1)}")
        a(f"s_bfe_u32 {s(t2)}, s2, 0x30003\ns_lshl_b32 {s(t0)}, {s(t0)}, 1\ns_add_u32 {s(sROT)}, {s(t0)}, {s(t2)}")
        a(f"s_lshl_b32 {s(t0)}, {s(t2)}, 2\ns_and_b32 {s(t1)}, s2, 3\ns_add_u32 {s(sTG)}, {s(t0)}, {s(t1)}")
    elif P["MAP"] == "2x4":
        a(f"s_lshr_b32 {s(t0)}, s2, 7\ns_sub_u32 {s(t0)}, 1, {s(t0)}\ns_and_b32 {s(t1)}, s2, 6\ns_add_u32 {s(sCG)}, {s(t0)}, {s(t1)}")
        a(f"s_bfe_u32 {s(t2)}, s2, 0x40003\ns_lshl_b32 {s(t0)}, {s(t0)}, 2\ns_add_u32 {s(sROT)}, {s(t0)}, {s(t2)}\ns_lshr_b32 {s(t1)}, {s(sCG)}, 1\ns_add_u32 {s(sROT)}, {s(sROT)}, {s(t1)}")
        a(f"s_lshl_b32 {s(t0)}, {s(t2)}, 1\ns_and_b32 {s(t1)}, s2, 1\ns_add_u32 {s(sTG)}, {s(t0)}, {s(t1)}")
    a(f"s_and_b32 {s(sROT)}, {s(sROT)}, {0 if P.get('NOROT') else 7}\ns_and_b32 {s(sW)}, {s(sWV)}, 3")
    vXs, vD = 1, 2
    a.c("x tile source: row lane>>3, slot lane&7 holds chunk slot ^ ((token>>1)&7);  128-byte-row weights: chunk slot ^ (4*((row>>1)&1))")
    a("v_lshrrev_b32 v3, 3, v0\nv_lshlrev_b32 v3, 10, v3\nv_and_b32 v4, 7, v0\nv_lshrrev_b32 v5, 4, v0\nv_xor_b32 v5, v4, v5")
    a(f"s_and_b32 {s(t0)}, {s(sWV)}, 1\ns_lshl_b32 {s(t0)}, {s(t0)}, 2\nv_xor_b32 v5, {s(t0)}, v5\nv_lshl_add_u32 v5, v5, 4, v3")
    a(f"s_lshl_b32 {s(t0)}, {s(sTG)}, 16\ns_lshl_b32 {s(t1)}, {s(sWV)}, 13\ns_add_u32 {s(t0)}, {s(t0)}, {s(t1)}\nv_add_u32 {v(vXs)}, {s(t0)}, v5")
    a(f"v_lshrrev_b32 v5, 2, v0\nv_and_b32 v5, 4, v5\nv_xor_b32 v5, v4, v5\nv_lshl_add_u32 v5, v5, 4, v3\ns_lshl_b32 {s(t0)}, {s(sCG)}, 7\nv_add_u32 {v(vD)}, {s(t0)}, v5")
    a(f"s_lshl_b32 {s(t0)}, {s(sROT)}, 7\ns_lshl_b32 {s(t2)}, {s(sROT)}, 16\ns_add_u32 {s(t1)}, {s(t1)}, {s(t2)}\ns_lshl_b32 {s(t2)}, {s(sWV)}, 10")
    if P["STAMP"]: a(f"v_mov_b32 v{VST}, 0")
    a(f"s_mov_b32 {s(rX+2)}, {2048*1024}\ns_mov_b32 {s(rX+3)}, 0x20000\ns_mov_b32 {s(rA+2)}, {512*1024}\ns_mov_b32 {s(rA+3)}, 0x20000")
    a("s_waitcnt lgkmcnt(0)")
    stamp(0); cyc(14)
    a(f"s_mov_b32 {s(rX)}, {s(pX)}\ns_mov_b32 {s(rX+1)}, {s(pX+1)}\ns_mov_b32 {s(rA)}, {s(pWQ)}\ns_mov_b32 {s(rA+1)}, {s(pWQ+1)}")
    a(f"s_load_dword {s(sTAG)}, {s(pWS,2)}, 0")
    def x_issue(kb):
        a(f"s_add_u32 m0, {s(t2)}, {X_+kb*8192}\ns_and_b32 {s(t0)}, {s(t0)}, 0x3ff")
        dma(vXs, rX, s(t0), ("x", kb)); a(f"s_add_u32 {s(t0)}, {s(t0)}, 128")
    def wq_lds(kb): return RING_ + (kb & 3)*16384 + (kb >> 2)*8192
    def wq_issue(kb):
        a(f"s_add_u32 m0, {s(t2)}, {wq_lds(kb)}\ns_and_b32 {s(t1)}, {s(t1)}, 0x7ffff")
        dma(vD, rA, s(t1), ("wq", kb)); a(f"s_add_u32 {s(t1)}, {s(t1)}, 0x10000")
    a(f"s_cmp_eq_u32 {s(sCG)}, 7\ns_cbranch_scc1 L_P0")
    for kb in range(8):
        x_issue(kb); wq_issue(kb)
        if P.get("STAMP2"): cyc(48+kb)
    a("s_branch L_P1")
    a.label("L_P0")
    a.c("producer workgroups: x and wk / wv first, wq afterwards.  image: k-step*2048 + matrix*1024")
    a.reset()
    x_issue(0); x_issue(1)
    narrow_src(3, 4, 5)
    a(f"s_bitcmp1_b32 {s(sWV)}, 0\ns_cselect_b32 {s(rB)}, {s(pWV)}, {s(pWK)}\ns_cselect_b32 {s(rB+1)}, {s(pWV+1)}, {s(pWK+1)}\ns_mov_b32 {s(rB+2)}, 16384\ns_mov_b32 {s(rB+3)}, 0x20000")
    a(f"s_lshr_b32 {s(t3)}, {s(sWV)}, 1\ns_lshl_b32 {s(t4)}, {s(sROT)}, 1\ns_add_u32 {s(t3)}, {s(t3)}, {s(t4)}\ns_lshl_b32 {s(t3)}, {s(t3)}, 10")
    for p in range(4):
        if p: x_issue(2*p); x_issue(2*p+1)
        a(f"s_add_u32 m0, {s(t2)}, {p*8192}\ns_and_b32 {s(t3)}, {s(t3)}, 0x3fff")
        dma(3, rB, s(t3), ("kv", p)); a(f"s_add_u32 {s(t3)}, {s(t3)}, 4096")
    for kb in range(8): wq_issue(kb)
    a.label("L_P1")
    srd(a, rWS, pWS, WS_BYTES)
    a(f"s_cmp_ge_u32 {s(sWV)}, 4\ns_cbranch_scc1 L_B")

    def tag_from_epoch():
        a(f"s_mul_i32 {s(sTAG)}, {s(sTAG)}, 0x9E3779B1\ns_add_u32 {s(sTAG)}, {s(sTAG)}, 0x7F4A7C15")

    def x16_addr(dst, tmp):
        a.c("x fragment address (16x16x32 operand): n*128 + ((G ^ (n>>1))*16)")
        a(f"v_and_b32 {v(tmp)}, 15, v0\nv_lshrrev_b32 {v(dst)}, 1, {v(tmp)}\nv_lshrrev_b32 {v(tmp+1)}, 4, v0\nv_xor_b32 {v(dst)}, {v(dst)}, {v(tmp+1)}")
        a(f"v_lshlrev_b32 {v(dst)}, 4, {v(dst)}\nv_lshl_add_u32 {v(dst)}, {v(tmp)}, 7, {v(dst)}")
    def narrow_tr(dst, tmp):
        a.c("transpose-read address in a 32-byte-row image: ((8G+r) ^ (4*(G&1)))*32 + c*8")
        a(f"v_lshrrev_b32 {v(tmp)}, 4, v0\nv_lshlrev_b32 {v(dst)}, 8, {v(tmp)}\nv_and_b32 {v(tmp)}, 1, {v(tmp)}\nv_lshl_add_u32 {v(dst)}, {v(tmp)}, 7, {v(dst)}")
        a(f"v_and_b32 {v(tmp)}, 15, v0\nv_lshl_add_u32 {v(dst)}, {v(tmp)}, 3, {v(dst)}")

    def x32_addr(dst, tmp, base):
        a.c("x fragment address (32x32x16 operand), four k-steps of a 64-wide block")
        a(f"v_and_b32 {v(dst)}, 31, v0\nv_bfe_u32 {v(tmp)}, v0, 1, 3\nv_lshrrev_b32 {v(tmp+1)}, 5, v0\nv_xor_b32 {v(tmp)}, {v(tmp)}, {v(tmp+1)}")
        a(f"v_lshlrev_b32 {v(tmp)}, 4, {v(tmp)}\nv_lshl_add_u32 {v(dst)}, {v(dst)}, 7, {v(tmp)}\nv_add_u32 {v(dst)}, {base}, {v(dst)}")
        for j in range(1, 4): a(f"v_xor_b32 {v(dst+j)}, {32*j}, {v(dst)}")
    def flag_voff(dst, tmp):
        a(f"v_bfe_u32 {v(dst)}, v0, 2, 3\nv_and_b32 {v(tmp)}, 3, v0\nv_lshlrev_b32 {v(tmp)}, 2, {v(tmp)}\nv_lshl_add_u32 {v(dst)}, {v(dst)}, 7, {v(tmp)}")

    def slow_path(lbl, back, T, Qf, R):
        Kf, V0, V1, S, M, vk, vv, tm = R, R+4, R+8, R+12, R+28, R+29, R+30, R+31
        a.label(lbl)
        a(f"v_lshlrev_b32 {v(vk)}, 4, v0\nv_lshrrev_b32 {v(vv)}, 5, v0\nv_lshlrev_b32 {v(vv)}, 8, {v(vv)}")
        a(f"v_and_b32 {v(tm)}, 15, v0\nv_lshl_add_u32 {v(vv)}, {v(tm)}, 4, {v(vv)}")
        a(f"v_mov_b32 {v(M)}, 0xff800000")
        for i in range(8): a(f"v_mov_b32 {v(V0+i)}, 0x3f803f80")
        for i in range(16): a(f"v_mov_b32 {v(T+i)}, 0")
        a(f"s_mov_b32 {s(t4)}, {KV}")
        l1 = a.newlabel("L_sm"); a.label(l1)
        a(f"buffer_load_dwordx4 {v(Kf,4)}, {v(vk)}, {s(rWS,4)}, {s(t4)} offen sc1\ns_waitcnt vmcnt(0)")
        a(f"v_mfma_f32_32x32x16_bf16 {v(S,16)}, {v(Kf,4)}, {v(Qf,4)}, 0\ns_nop 15")
        for i in range(8): a(f"v_max3_f32 {v(M)}, {v(M)}, {v(S+2*i)}, {v(S+2*i+1)}")
        a(f"s_add_u32 {s(t4)}, {s(t4)}, 2048\ns_cmp_lt_u32 {s(t4)}, {KV+64*2048}\ns_cbranch_scc1 {l1}")
        a(f"v_mov_b32 {v(tm)}, {v(M)}\ns_nop 1\nv_permlane32_swap_b32 {v(tm)}, {v(M)}\ns_nop 1\nv_max_f32 {v(M)}, {v(M)}, {v(tm)}")
        a(f"s_mov_b32 {s(t4)}, {KV}")
        l2 = a.newlabel("L_sp"); a.label(l2)
        a(f"buffer_load_dwordx4 {v(Kf,4)}, {v(vk)}, {s(rWS,4)}, {s(t4)} offen sc1")
        a(f"s_mov_b64 exec, {s(sC0,2)}")
        a(f"buffer_load_dwordx4 {v(V0,4)}, {v(vv)}, {s(rWS,4)}, {s(t4)} offen offset:1024 sc1")
        a(f"buffer_load_dwordx4 {v(V1,4)}, {v(vv)}, {s(rWS,4)}, {s(t4)} offen offset:1536 sc1")
        a("s_mov_b64 exec, -1\ns_waitcnt vmcnt(0)")
        a(f"v_mfma_f32_32x32x16_bf16 {v(S,16)}, {v(Kf,4)}, {v(Qf,4)}, 0\ns_nop 15")
        for i in range(16): a(f"v_sub_f32 {v(S+i)}, {v(S+i)}, {v(M)}")
        for i in range(16): a(f"v_exp_f32 {v(S+i)}, {v(S+i)}")
        a("s_nop 1")
        a(f"v_smfmac_f32_32x32x32_bf16 {v(T,16)}, {v(V0,4)}, {v(S,8)}, v1")
        a(f"v_smfmac_f32_32x32x32_bf16 {v(T,16)}, {v(V1,4)}, {v(S+8,8)}, v1")
        a(f"s_add_u32 {s(t4)}, {s(t4)}, 2048\ns_cmp_lt_u32 {s(t4)}, {KV+64*2048}\ns_cbranch_scc1 {l2}")
        a(f"s_nop 15\ns_branch {back}")

    a.c("---------------- A waves: set-up while the tiles are in flight")
    vIDX, vKo, vVo, vWO, vWL, vRO, vRL, vG, vOB, vL4 = 1, 2, 3, 4, 5, 6, 9, 12, 13, 14
    S0, S1, KVR, QF, O = 16, 32, 48, 96, 128
    sKVo, sOB = 80, 81
    vXa, vTq = 32, 36
    a(f"s_and_b32 {s(t0)}, {s(sW)}, 1\ns_lshl_b32 {s(t0)}, {s(t0)}, 12\ns_add_u32 {s(t0)}, {s(t0)}, {X_}")
    x32_addr(vXa, 16, s(t0))
    a.c("wq transpose-read: row 8h+r, chunk 4u+2grp+(c&1), sub c>>1")
    a(f"v_lshrrev_b32 v16, 5, v0\nv_bfe_u32 v17, v0, 2, 2\nv_lshl_add_u32 v16, v16, 3, v17\nv_lshlrev_b32 v16, 7, v16")
    a(f"v_bfe_u32 v17, v0, 4, 1\nv_lshl_add_u32 v16, v17, 5, v16\nv_and_b32 v17, 1, v0\nv_lshl_add_u32 v16, v17, 4, v16\nv_and_b32 v17, 2, v0\nv_lshl_add_u32 v16, v17, 2, v16")
    a(f"v_and_b32 v17, 8, v0\nv_lshl_add_u32 v16, v17, 3, v16\ns_lshr_b32 {s(t0)}, {s(sW)}, 1\ns_lshl_b32 {s(t0)}, {s(t0)}, 6\nv_xor_b32 v16, {s(t0)}, v16\nv_add_u32 {v(vTq)}, {RING_}, v16")
    a(f"v_mov_b32 {v(vIDX)}, {hex(IDX)}\nv_lshlrev_b32 {v(vL4)}, 2, v0\nv_lshlrev_b32 v16, 4, v0")
    a(f"s_lshl_b32 {s(t0)}, {s(sW)}, 15\ns_add_u32 {s(t0)}, {s(t0)}, {KV}\nv_add_u32 {v(vKo)}, {s(t0)}, v16")
    a(f"v_and_b32 v17, 15, v0\nv_lshlrev_b32 v17, 4, v17\nv_lshrrev_b32 v18, 5, v0\nv_lshl_add_u32 v17, v18, 8, v17\nv_add_u32 {v(vVo)}, {s(t0)}, v17")
    a(f"v_and_b32 v18, 16, v0\nv_lshl_add_u32 {v(vOB)}, v18, 10, v17")
    a(f"s_mul_i32 {s(t0)}, {s(sW)}, 6144\nv_add_u32 {v(vWO)}, {s(t0)}, v16\ns_mul_i32 {s(t0)}, {s(sW)}, 768\nv_add_u32 {v(vWL)}, {s(t0)}, {v(vL4)}")
    for i in range(3):
        a(f"s_add_u32 {s(t0)}, {s(sW)}, {3-i}\ns_and_b32 {s(t0)}, {s(t0)}, 3\ns_mul_i32 {s(t0)}, {s(t0)}, 3\ns_add_u32 {s(t0)}, {s(t0)}, {i}")
        a(f"s_lshl_b32 {s(t1)}, {s(t0)}, 11\nv_add_u32 {v(vRO+i)}, {s(t1)}, v16\ns_lshl_b32 {s(t1)}, {s(t0)}, 8\nv_add_u32 {v(vRL+i)}, {s(t1)}, {v(vL4)}")
    a.c("o tile address: OBUF + tg*64K + t*32K + 2cg*1K + hh_lo*512")
    a(f"s_lshl_b32 {s(sOB)}, {s(sTG)}, 16\ns_lshl_b32 {s(t0)}, {s(sCG)}, 11\ns_add_u32 {s(sOB)}, {s(sOB)}, {s(t0)}\ns_add_u32 {s(sOB)}, {s(sOB)}, {OBUF}")
    a(f"s_and_b32 {s(t0)}, {s(sW)}, 1\ns_lshl_b32 {s(t0)}, {s(t0)}, 15\ns_add_u32 {s(sOB)}, {s(sOB)}, {s(t0)}\ns_lshr_b32 {s(t0)}, {s(sW)}, 1\ns_lshl_b32 {s(t0)}, {s(t0)}, 9\ns_add_u32 {s(sOB)}, {s(sOB)}, {s(t0)}")
    a(f"s_lshr_b32 {s(sKVo)}, s2, 3\ns_lshl_b32 {s(sKVo)}, {s(sKVo)}, 11\ns_and_b32 {s(sKVo)}, {s(sKVo)}, 0x7fff")
    a(f"s_mov_b32 {s(sC0)}, 0xffff\ns_mov_b32 {s(sC0+1)}, 0xffff")
    a.c("V operand padding rows: ones in rows 16 and 20 (row sums), zero elsewhere")
    a(f"v_and_b32 v17, 27, v0\nv_cmp_eq_u32 vcc, 16, v17\nv_mov_b32 v18, 0x3f803f80\ns_nop 0\nv_cndmask_b32 v17, 0, v18, vcc")
    for sl in range(4):
        for i in range(8): a(f"v_mov_b32 {v(KVR+12*sl+4+i)}, v17")
    for i in range(8): a(f"v_mov_b32 {v(S1+8+i)}, 0")
    a("s_nop 0")
    for c in range(8): a(f"v_mfma_f32_32x32x8bf16_1k {v(O+16*c,16)}, {v(S1+8,2)}, {v(S1+8,2)}, 0")
    x16_addr(37, 16)
    a(f"s_lshl_b32 {s(t0)}, {s(sW)}, 11\ns_add_u32 {s(t0)}, {s(t0)}, {X_}\nv_add_u32 v37, {s(t0)}, v37\nv_xor_b32 v38, 64, v37\nv_and_b32 v39, 48, v0")
    a(f"s_cmp_lg_u32 {s(sCG)}, 7\ns_cbranch_scc1 L_A1")
    a("s_waitcnt vmcnt(14)\ns_barrier\ns_waitcnt vmcnt(8)\ns_barrier\ns_waitcnt vmcnt(3)")
    a.label("L_A1")
    a("s_waitcnt vmcnt(6) lgkmcnt(0)\ns_barrier")
    a.reset()
    tag_from_epoch()
    stamp(1)
    QA = 16
    def q_read(ks):
        st = QF + 8*(ks % 4); kb, j = ks >> 2, ks & 3
        a.lds(f"ds_read_b128 {v(st,4)}, {v(vXa+j)} offset:{kb*8192}", ("f", ks))
        for rd in range(2):
            a.lds(f"ds_read_b64_tr_b16 {v(st+4+2*rd,2)}, {v(vTq)} offset:{wq_lds(kb)-RING_ + j*2048 + rd*512}", ("f", ks))
    def q_mfma(ks):
        st = QF + 8*(ks % 4)
        a.wait(lg=("f", ks))
        a(f"v_mfma_f32_32x32x16_bf16 {v(QA,16)}, {v(st+4,4)}, {v(st,4)}, {v(QA,16) if ks else 0}")
    for ks in range(3): q_read(ks)
    for ks in range(32):
        if ks + 3 == 20:
            a.wait_all(); a("s_barrier")
        if ks + 3 < 32: q_read(ks + 3)
        if ks + 3 == 32:
            a.wait_all(vm=False); a("s_barrier")
        q_mfma(ks)
    stamp(2)
    a.c("sentinels, gate operands, q epilogue")
    a("v_mov_b32 v32, -1\nv_mov_b32 v33, -1\nv_mov_b32 v34, -1\nv_mov_b32 v35, -1")
    a(f"buffer_store_dwordx4 v[32:35], {v(vOB)}, {s(rWS,4)}, {s(sOB)} offen sc1")
    a(f"buffer_store_dwordx4 v[32:35], {v(vOB)}, {s(rWS,4)}, {s(sOB)} offen offset:1024 sc1")
    for r in range(2):
        for i in range(3): a.lds(f"ds_write_b32 {v(vWL)}, v32 offset:{L_+(12*r+i)*256}")
    def g_read(ks):
        st = QF + 8*(ks % 4)
        a.lds(f"ds_read_b128 {v(st,4)}, {v(37+(ks&1))} offset:{(ks>>1)*8192}", ("g", ks))
        a.lds(f"ds_read_b128 {v(st+4,4)}, v39 offset:{GW_+ks*64}", ("g", ks))
    for ks in range(3): g_read(ks)
    cq = 0.25 * math.log2(math.e)
    a(f"s_mov_b32 {s(sC0+2)}, {f32(cq)}\ns_mov_b32 {s(sC0+3)}, {f32(cq)}")
    a(f"s_lshr_b32 {s(t0)}, {s(sW)}, 1\ns_lshl_b32 {s(t0)}, {s(t0)}, 2\ns_and_b32 {s(t1)}, {s(sW)}, 1\ns_add_u32 {s(t0)}, {s(t0)}, {s(t1)}\ns_lshl_b32 {s(t0)}, {s(t0)}, 10")
    a(f"v_lshl_add_u32 v36, v0, 4, {s(t0)}")
    for i in range(0, 16, 2): a(f"v_pk_mul_f32 {v(QA+i,2)}, {v(QA+i,2)}, {s(sC0+2,2)}")
    for i in range(8): a(f"v_cvt_pk_bf16_f32 {v(QA+i)}, {v(QA+2*i)}, {v(QA+2*i+1)}")
    a.lds(f"ds_write_b128 v36, {v(QA,4)} offset:{Q_}"); a.lds(f"ds_write_b128 v36, {v(QA+4,4)} offset:{Q_+2048}")
    a("v_mov_b32 v24, 1")
    a.lds(f"ds_add_u32 {v(vL4)}, v24 offset:{CA_}")
    z = 28
    for ks in range(16):
        if ks + 3 < 16: g_read(ks + 3)
        st = QF + 8*(ks % 4)
        a.wait(lg=("g", ks))
        a(f"v_mfma_f32_16x16x32_bf16 {v(z,4)}, {v(st+4,4)}, {v(st,4)}, {v(z,4) if ks else 0}")
    lds_wait(vL4, CA_, 4, 25)
    for i in range(4):
        a(f"s_add_u32 {s(t0)}, {s(sW)}, {i+1}\ns_and_b32 {s(t0)}, {s(t0)}, 3\ns_lshl_b32 {s(t0)}, {s(t0)}, 10\nv_lshl_add_u32 v25, v0, 4, {s(t0)}")
        a(f"ds_read_b128 {v(QF+4*i,4)}, v25 offset:{Q_}\nds_read_b128 {v(QF+16+4*i,4)}, v25 offset:{Q_+4096}")
    a(f"v_cvt_pk_bf16_f32 {v(z)}, {v(z)}, {v(z)}\nv_and_b32 {v(z)}, 0xffff0000, {v(z)}")
    a(f"v_mul_f32 {v(z)}, {f32(-math.log2(math.e))}, {v(z)}\nv_exp_f32 {v(z)}, {v(z)}\ns_nop 0\nv_add_f32 {v(z)}, 1.0, {v(z)}\nv_rcp_f32 {v(z)}, {v(z)}\ns_nop 0")
    a(f"v_cvt_pk_bf16_f32 {v(z)}, {v(z)}, {v(z)}\nv_and_b32 {v(z)}, 0xffff0000, {v(z)}\nv_sub_f32 {v(z+1)}, 1.0, {v(z)}")
    a(f"v_cvt_pk_bf16_f32 {v(z+1)}, {v(z+1)}, {v(z+1)}\nv_and_b32 {v(z+1)}, 0xffff0000, {v(z+1)}")
    a(f"s_lshl_b32 {s(t0)}, {s(sW)}, 6\nv_and_b32 v25, 15, v0\nv_lshl_add_u32 v25, v25, 2, {s(t0)}")
    a(f"ds_write_b32 v25, {v(z)} offset:{G_}\nds_write_b32 v25, {v(z+1)} offset:{G1_}")
    flag_voff(26, 27)
    a(f"s_lshl_b32 {s(t3)}, {s(sW)}, 10\ns_add_u32 {s(t3)}, {s(t3)}, {FKV}")
    a(f"s_and_b32 {s(t0)}, {s(sW)}, 1\ns_lshl_b32 {s(t0)}, {s(t0)}, 7\nv_and_b32 v27, 31, v0\nv_lshl_add_u32 v27, v27, 2, {s(t0)}")
    a(f"s_waitcnt vmcnt(0)\nds_add_u32 {v(vL4)}, v24 offset:{CA_}")
    stamp(3)
    spin_init(); a.label("L_kvpoll")
    a(f"buffer_load_dword v25, v26, {s(rWS,4)}, {s(t3)} offen sc1\ns_waitcnt vmcnt(0)")
    a(f"v_cmp_ne_u32 vcc, {s(sTAG)}, v25")
    spin_back("L_kvpoll", 1)
    stamp(4)
    def kv_load(sl):
        a(f"buffer_load_dwordx4 {v(KVR+12*sl,4)}, {v(vKo)}, {s(rWS,4)}, {s(sKVo)} offen sc1")
        a(f"s_mov_b64 exec, {s(sC0,2)}")
        a(f"buffer_load_dwordx4 {v(KVR+12*sl+4,4)}, {v(vVo)}, {s(rWS,4)}, {s(sKVo)} offen offset:1024 sc1")
        a(f"buffer_load_dwordx4 {v(KVR+12*sl+8,4)}, {v(vVo)}, {s(rWS,4)}, {s(sKVo)} offen offset:1536 sc1")
        a(f"s_mov_b64 exec, -1\ns_add_u32 {s(sKVo)}, {s(sKVo)}, 2048\ns_and_b32 {s(sKVo)}, {s(sKVo)}, 0x7fff")
    for sl in range(3): kv_load(sl)
    lds_wait(vL4, CA_, 8, 25)
    a(f"ds_read_b32 {v(vG)}, v27 offset:{G_}")
    a("s_setprio 1")
    QK = lambda dst, c, k: f"v_mfma_f32_32x32x16_bf16 {v(dst,16)}, {v(KVR+12*k,4)}, {v(QF+4*c,4)}, 0"
    PV0 = lambda src, c, k: f"v_smfmac_f32_32x32x32_bf16 {v(O+16*c,16)}, {v(KVR+12*k+4,4)}, {v(src,8)}, {v(vIDX)}"
    PV1 = lambda src, c, k: f"v_smfmac_f32_32x32x32_bf16 {v(O+16*c,16)}, {v(KVR+12*k+8,4)}, {v(src+8,8)}, {v(vIDX)}"
    def tile(n, prev, cur, nxt, ev):
        cb, ob = (S0, S1) if n % 2 == 0 else (S1, S0)
        for k in range(16):
            for f in ev.get(k, []): f()
            if k == 2: a(PV1(ob, *prev))
            if k == 5 and nxt: a(QK(ob, *nxt))
            if k == 10: a(PV0(cb, *cur))
            a(f"v_exp_f32 {v(cb+k)}, {v(cb+k)}")
    def flush(c):
        r, i = c >> 2, c & 3
        ob = (O1_, RING_)[r] + i*2048
        a(f"ds_write_b128 {v(vWO)}, {v(O+16*c,4)} offset:{ob}\nds_write_b128 {v(vWO)}, {v(O+16*c+4,4)} offset:{ob+1024}")
        a(f"ds_write_b32 {v(vWL)}, {v(O+16*c+8)} offset:{L_+(12*r+i)*256}")
    def gather(r):
        T = O + 64*r
        for i in range(3): a(f"ds_read_b32 {v(T+16*i+8)}, {v(vRL+i)} offset:{L_+12*r*256}")
        if r == 0: a(f"ds_read_b32 {v(T+9)}, {v(vL4)} offset:{CB_}")
        for i in range(3):
            for hf in range(2): a(f"ds_read_b128 {v(T+16*i+4*hf,4)}, {v(vRO+i)} offset:{(O1_, RING_)[r]+hf*1024}")
    def gcheck(r):
        T = O + 64*r
        a(f"s_waitcnt lgkmcnt(0)\nv_max3_u32 {v(T+10)}, {v(T+8)}, {v(T+24)}, {v(T+40)}")
        if r == 0: a(f"v_max_u32 {v(T+10)}, {v(T+10)}, {v(T+9)}")
        a(f"v_cmp_le_u32 vcc, -16, {v(T+10)}")
    def acc9(d, x):
        for i in range(0, 8, 2): a(f"v_pk_add_f32 {v(d+i,2)}, {v(d+i,2)}, {v(x+i,2)}")
        a(f"v_add_f32 {v(d+8)}, {v(d+8)}, {v(x+8)}")
    def finish(r):
        T = O + 64*r; W = T + 48
        gcheck(r)
        a(f"s_cbranch_vccnz L_retry{r}"); a.label(f"L_got{r}")
        acc9(T, T+16); acc9(T, T+32); acc9(W, T)
        lo = (127 + P["LO"]) << 23; hi = (127 + P["HI"]) << 23
        a(f"v_subrev_u32 {v(T)}, {hex(lo)}, {v(W+8)}\nv_cmp_le_u32 vcc, {hex(0 if P['FORCE_SLOW'] else hi-lo)}, {v(T)}")
        a(f"s_cbranch_vccnz L_slow{r}"); a.label(f"L_back{r}")
        a(f"v_rcp_f32 {v(T)}, {v(W+8)}\ns_nop 0\nv_mul_f32 {v(T)}, {v(T)}, {v(vG)}")
        for i in range(0, 8, 2): a(f"v_pk_mul_f32 {v(W+i,2)}, {v(W+i,2)}, {v(T,2)} op_sel_hi:[1,0]")
        for i in range(4): a(f"v_cvt_pk_bf16_f32 {v(W+i)}, {v(W+2*i)}, {v(W+2*i+1)}")
        a(f"v_min_u32 {v(W)}, -2, {v(W)}")
        a(f"buffer_store_dwordx4 {v(W,4)}, {v(vOB)}, {s(rWS,4)}, {s(sOB)} offen offset:{r*1024} sc1")
    a("s_waitcnt vmcnt(6)")
    if P.get("NOATT"): a("s_sleep 127\ns_sleep 127\ns_sleep 127")
    a(QK(S0, 0, 0)); a(f"s_mov_b32 {s(t0)}, 3\ns_nop 10")
    stamp(5)
    a(".p2align 3")
    a.label("L_att")
    seq = [(c, k) for k in range(4) for c in range(8)]
    for n, cur in enumerate(seq):
        ev = {}
        if cur[0] == 0: ev[12] = [lambda: kv_load((cur[1] + 3) % 4)]
        if cur[0] == 7: ev[5] = [lambda: a("s_waitcnt vmcnt(6)")]
        tile(n, seq[n-1], cur, seq[(n+1) % 32], ev)
    a(f"s_sub_u32 {s(t0)}, {s(t0)}, 1\ns_cmp_lg_u32 {s(t0)}, 0\ns_cbranch_scc1 L_att")
    stamp(6)
    seq = [(0,0),(0,1),(0,2),(1,0),(1,1),(1,2),(0,3),(1,3)] + [(c, k) for c in range(2, 8) for k in range(4)]
    for n, cur in enumerate(seq):
        ev = {}
        prev = seq[n-1] if n else (7, 3)
        if n == 0: ev[5] = [lambda: a("s_waitcnt vmcnt(0)")]; ev[12] = [lambda: kv_load(3)]
        if cur == (1, 2): ev[5] = [lambda: a("s_waitcnt vmcnt(0)")]
        if n and prev[1] == 3:
            ev[13] = [(lambda: finish(0)) if prev[0] == 3 else (lambda: flush(prev[0]))]
        if cur in ((3, 3), (7, 3)): ev[7] = [lambda: gather(cur[0] >> 2)]
        tile(n, prev, cur, seq[n+1] if n < 31 else None, ev)
    a("s_nop 1")
    a(PV1(S1, 7, 3))
    finish(1)
    a("s_barrier")
    stamp(7); stamp_out()
    a("s_endpgm")
    for r in range(2):
        a.label(f"L_retry{r}"); spin_init(); a.label(f"L_retryl{r}")
        gather(r); gcheck(r); spin_back(f"L_retryl{r}")
        a(f"s_branch L_got{r}")

    a.label("L_B")
    a.reset()
    vW, vTr, vXb, vL16, vL4, vTr0, vGs = 3, 1, 6, 10, 11, 12, 13
    ACC, WF, XB, TM = 16, 112, 160, 192
    sRING, sBLK, sOOB, sU = 80, 81, 82, 83
    a(f"s_lshl_b32 {s(sRING)}, {s(sW)}, 14\ns_add_u32 {s(sRING)}, {s(sRING)}, {RING_}")
    a(f"v_lshlrev_b32 {v(vL16)}, 4, v0\nv_lshlrev_b32 {v(vL4)}, 2, v0")
    a(f"s_lshl_b32 {s(t0)}, {s(sCG)}, 2\ns_add_u32 {s(sU)}, {s(t0)}, {s(sW)}")
    srd(a, rA, pW1, 512*2752); srd(a, rB, pW3, 512*2752)
    a(f"s_mul_i32 {s(t0)}, {s(sU)}, 96")
    for q in range(3):
        a(f"v_add_u32 v16, {64*q}, v0\nv_mul_u32_u24 v17, 10923, v16\nv_lshrrev_b32 v17, 16, v17\nv_mul_u32_u24 v18, 6, v17\nv_sub_u32 v18, v16, v18")
        a(f"v_mul_u32_u24 v17, 2752, v17\nv_lshl_add_u32 v17, v18, 4, v17\nv_add_u32 {v(vW+q)}, {s(t0)}, v17")
    a(f"s_mul_i32 {s(sBLK)}, {s(sROT)}, {64*2752}\ns_mul_i32 {s(t5)}, {s(sW)}, 6400")
    def w13_issue(base, off, part, soff):
        r = rA if part < 3 else rB
        a(f"s_add_u32 m0, {s(base)}, {off + (part//3)*W3OFF + (part%3)*1024}\ns_nop 0")
        a(f"buffer_load_dwordx4 {v(vW + part%3)}, {s(r,4)}, {s(soff)} offen lds")
    def blk_next():
        a(f"s_add_u32 {s(sBLK)}, {s(sBLK)}, {32*2752}\ns_cmp_eq_u32 {s(sBLK)}, {512*2752}\ns_cselect_b32 {s(sBLK)}, 0, {s(sBLK)}")
    def blk_issue(base, off):
        for p in range(6): w13_issue(base, off, p, sBLK)
        blk_next()
    a(f"s_cmp_eq_u32 {s(sCG)}, 7\ns_cbranch_scc1 L_B0")
    blk_issue(t5, 0)
    a.label("L_B0")
    a(f"s_mul_i32 {s(t0)}, {s(sTG)}, {HSTRIDE}\ns_add_u32 {s(t0)}, {s(t0)}, {HBUF}")
    srd(a, rH, pWS, 86*2048, off=s(t0))
    srd(a, rW2, pGW, 1024)
    a(f"s_lshl_b32 {s(t2)}, {s(sROT)}, 3\nv_add_u32 v16, {s(t2)}, v0\nv_and_b32 v16, 63, v16\nv_lshlrev_b32 {v(vGs)}, 4, v16")
    a.c("w1 / w3 transpose-read address: grp*3200 + (8h+r)*96 + c*8")
    a(f"v_lshrrev_b32 v16, 5, v0\nv_lshlrev_b32 v16, 3, v16\nv_bfe_u32 v17, v0, 2, 2\nv_add_u32 v16, v16, v17\nv_mul_u32_u24 v16, 96, v16")
    a(f"v_and_b32 v17, 3, v0\nv_lshl_add_u32 v16, v17, 3, v16\nv_bfe_u32 v17, v0, 4, 1\nv_mul_u32_u24 v17, {W3OFF}, v17")
    a(f"v_add3_u32 {v(vTr)}, v16, v17, {s(sRING)}\nv_add3_u32 {v(vTr0)}, v16, v17, {s(t5)}")
    x32_addr(vXb, 16, X_)
    a(f"v_mov_b32 {v(TM)}, 0\nv_mov_b32 {v(TM+1)}, 0\nv_mov_b32 {v(TM+2)}, -8\ns_nop 0")
    for i in range(6): a(f"v_mfma_f32_32x32x8bf16_1k {v(ACC+16*i,16)}, {v(TM,2)}, {v(TM,2)}, 0")
    def gw_and_counters():
        a(f"s_mov_b32 m0, {GW_}\nds_write_b32 {v(vL4)}, {v(TM)} offset:{CA_}\nds_write_b32 {v(vL4)}, {v(TM+2)} offset:{CB_}")
        a(f"buffer_load_dwordx4 {v(vGs)}, {s(rW2,4)}, 0 offen lds")
    def trs(st, addr, off):
        return [f"ds_read_b64_tr_b16 {v(WF+24*st+12*ks+4*u+2*rd,2)}, {v(addr)} offset:{off + ks*1536 + rd*384 + u*32}"
                for ks in range(2) for u in range(3) for rd in range(2)]
    def xrs(st, off):
        return [f"ds_read_b128 {v(XB+16*st+8*ks+4*t,4)}, {v(vXb+2*st+ks)} offset:{off + t*4096}" for ks in range(2) for t in range(2)]
    a(f"s_cmp_eq_u32 {s(sCG)}, 7\ns_cbranch_scc1 L_Bp")
    a("s_waitcnt vmcnt(12) lgkmcnt(0)\ns_barrier")
    tag_from_epoch()
    stamp(1)
    gw_and_counters()
    for x in xrs(0, 0): a(x)
    a("s_waitcnt vmcnt(7) lgkmcnt(0)\ns_barrier")
    blk_issue(sRING, SLOTOFF[1])
    a("s_waitcnt vmcnt(6)")
    for x in trs(0, vTr0, 0): a(x)
    a("s_waitcnt lgkmcnt(0)\ns_barrier\ns_branch L_B2")

    a.label("L_Bp")
    a.c("producer: K and V of 16 tokens per wave")
    pT, pX_, pA, KA, VA, F = 200, 202, 204, 208, 212, 112
    narrow_tr(pT, 216)
    a(f"v_xor_b32 {v(pT+1)}, 128, {v(pT)}")
    x16_addr(pX_, 216)
    a(f"s_lshl_b32 {s(t0)}, {s(sW)}, 11\ns_add_u32 {s(t0)}, {s(t0)}, {X_}\nv_add_u32 {v(pX_)}, {s(t0)}, {v(pX_)}\nv_xor_b32 {v(pX_+1)}, 64, {v(pX_)}")
    a.c("publish address: even lane rows K, odd lane rows V")
    a(f"v_and_b32 v216, 15, v0\nv_lshlrev_b32 v216, 4, v216\nv_lshrrev_b32 v217, 5, v0")
    a(f"s_and_b32 {s(t0)}, {s(sW)}, 1\ns_lshl_b32 {s(t1)}, {s(t0)}, 8\ns_lshl_b32 {s(t0)}, {s(t0)}, 9\ns_add_u32 {s(t0)}, {s(t0)}, 1024")
    a(f"v_lshl_add_u32 v218, v217, 9, {s(t1)}\nv_lshl_add_u32 v219, v217, 8, {s(t0)}\nv_and_b32 v217, 16, v0\nv_cmp_ne_u32 vcc, 0, v217\ns_nop 1\nv_cndmask_b32 v218, v218, v219, vcc\nv_add_u32 {v(pA)}, v216, v218")
    a(f"s_lshl_b32 {s(t4)}, {s(sTG)}, 1\ns_lshr_b32 {s(t0)}, {s(sW)}, 1\ns_add_u32 {s(t4)}, {s(t4)}, {s(t0)}\ns_lshl_b32 {s(t4)}, {s(t4)}, 11\ns_add_u32 {s(t4)}, {s(t4)}, {KV}")
    a(f"s_lshl_b32 {s(t3)}, {s(sTG)}, 7\ns_lshl_b32 {s(t0)}, {s(sW)}, 2\ns_add_u32 {s(t3)}, {s(t3)}, {s(t0)}\ns_add_u32 {s(t3)}, {s(t3)}, {FKV}")
    a("s_waitcnt vmcnt(14) lgkmcnt(0)\ns_barrier")
    tag_from_epoch()
    stamp(1)
    def kvp_read(ks):
        st = F + 12*(ks % 4)
        a.lds(f"ds_read_b128 {v(st,4)}, {v(pX_+(ks&1))} offset:{(ks>>1)*8192}", ("f", ks))
        for m in range(2):
            for rd in range(2):
                a.lds(f"ds_read_b64_tr_b16 {v(st+4+4*m+2*rd,2)}, {v(pT+rd)} offset:{ks*2048+m*1024}", ("f", ks))
    def kvp_mfma(ks):
        st = F + 12*(ks % 4)
        a.wait(lg=("f", ks))
        a(f"v_mfma_f32_16x16x32_bf16 {v(KA,4)}, {v(st+4,4)}, {v(st,4)}, {v(KA,4) if ks else 0}")
        a(f"v_mfma_f32_16x16x32_bf16 {v(VA,4)}, {v(st,4)}, {v(st+8,4)}, {v(VA,4) if ks else 0}")
    for hf in range(2):
        if hf: a("s_waitcnt vmcnt(8)\ns_barrier")
        for ks in range(8*hf, 8*hf+3): kvp_read(ks)
        for ks in range(8*hf, 8*hf+8):
            if ks + 3 < 8*hf+8: kvp_read(ks + 3)
            kvp_mfma(ks)
    a(f"v_mov_b32 v220, {s(sTAG)}\ns_nop 5")
    a(f"v_cvt_pk_bf16_f32 v216, {v(KA)}, {v(KA+1)}\nv_cvt_pk_bf16_f32 v217, {v(KA+2)}, {v(KA+3)}")
    a(f"v_cvt_pk_bf16_f32 v218, {v(VA)}, {v(VA+1)}\nv_cvt_pk_bf16_f32 v219, {v(VA+2)}, {v(VA+3)}\ns_nop 1")
    a("v_permlane16_swap_b32 v216, v218\nv_permlane16_swap_b32 v217, v219")
    a(f"buffer_store_dwordx4 v[216:219], {v(pA)}, {s(rWS,4)}, {s(t4)} offen sc1")
    stamp(13)
    a("s_waitcnt vmcnt(4)\ns_barrier")
    gw_and_counters()
    a("s_waitcnt vmcnt(1)")
    a(f"s_mov_b64 exec, 1\nbuffer_store_dword v220, {v(TM)}, {s(rWS,4)}, {s(t3)} offen sc1\ns_mov_b64 exec, -1")
    stamp(2)
    a("s_waitcnt lgkmcnt(0)\ns_barrier\ns_waitcnt vmcnt(1)\ns_barrier")
    a(f"s_cmp_lg_u32 {s(sW)}, 0\ns_cbranch_scc1 L_Bh")
    blk_issue(sRING, SLOTOFF[0]); blk_issue(sRING, SLOTOFF[1])
    for x in xrs(0, 0): a(x)
    a("s_waitcnt vmcnt(6)")
    for x in trs(0, vTr, SLOTOFF[0]): a(x)
    a("s_waitcnt lgkmcnt(0)")
    a.label("L_B2")
    if P.get("SKIP1"): a("s_branch L_Bh")
    cyc(40)
    a(f"s_mov_b32 {s(t0)}, 8\ns_mov_b32 {s(sOOB)}, {s(sBLK)}")
    a(".p2align 3")
    a.label("L_ffn1")
    for st in range(2):
        M = [f"v_mfma_f32_32x32x16_bf16 {v(ACC+16*(2*u+t),16)}, {v(WF+24*st+12*ks+4*u,4)}, {v(XB+16*st+8*ks+4*t,4)}, {v(ACC+16*(2*u+t),16)}"
             for ks in range(2) for u in range(3) for t in range(2)]
        T = trs(st ^ 1, vTr, SLOTOFF[st ^ 1]); XR = xrs(st ^ 1, 8192 if st else 0)
        for k in range(3):
            a(M[k]); w13_issue(sRING, SLOTOFF[st], 2*k, sOOB); w13_issue(sRING, SLOTOFF[st], 2*k+1, sOOB)
        for x in XR: a(x)
        a(M[3]); a("s_waitcnt vmcnt(6)")
        for k in range(4):
            for x in T[3*k:3*k+3]: a(x)
            a(M[4+k])
        blk_next()
        if st == 1: a(f"s_sub_u32 {s(t0)}, {s(t0)}, 1")
        a(f"s_cmp_gt_u32 {s(t0)}, 1\ns_cselect_b32 {s(sOOB)}, {s(sBLK)}, 0x7ff00000")
        a(M[8])
        if st == 1:
            a("s_setprio 2")
            for j in range(4): a(f"v_add_u32 {v(vXb+j)}, 0x2000, {v(vXb+j)}")
            a("s_setprio 0")
        a(M[9]); a(M[10]); a(M[11])
        a("s_waitcnt lgkmcnt(0)")
    if P["STAMP"]:
        a(f"s_memtime s[100:101]\ns_add_u32 m0, {s(t0)}, 32\ns_setprio 2\ns_waitcnt lgkmcnt(0)\nv_writelane_b32 v{VST}, s100, m0\ns_setprio 0")
    a(f"s_cmp_lg_u32 {s(t0)}, 0\ns_cbranch_scc1 L_ffn1")
    stamp(3)
    a.c("SwiGLU epilogue")
    a(f"s_setprio 2\ns_mov_b32 {s(sC0)}, {f32(-math.log2(math.e))}\ns_mov_b32 {s(sC0+1)}, {s(sC0)}\ns_mov_b32 {s(sC0+2)}, 1.0\ns_mov_b32 {s(sC0+3)}, 1.0")
    a(f"s_mul_i32 {s(t0)}, {s(sU)}, {3*2048}")
    for u in range(3):
        for t in range(2):
            A_ = ACC + 16*(2*u+t)
            for i in range(0, 8, 2): a(f"v_pk_mul_f32 {v(TM+i,2)}, {v(A_+i,2)}, {s(sC0,2)}")
            for i in range(8): a(f"v_exp_f32 {v(TM+i)}, {v(TM+i)}")
            for i in range(0, 8, 2): a(f"v_pk_mul_f32 {v(A_+i,2)}, {v(A_+i,2)}, {v(A_+8+i,2)}")
            for i in range(0, 8, 2): a(f"v_pk_add_f32 {v(TM+i,2)}, {v(TM+i,2)}, {s(sC0+2,2)}")
            for i in range(8): a(f"v_rcp_f32 {v(TM+i)}, {v(TM+i)}")
            for i in range(0, 8, 2): a(f"v_pk_mul_f32 {v(A_+i,2)}, {v(A_+i,2)}, {v(TM+i,2)}")
            for i in range(4): a(f"v_cvt_pk_bf16_f32 {v(A_+8+i)}, {v(A_+2*i)}, {v(A_+2*i+1)}")
            a(f"buffer_store_dwordx4 {v(A_+8,4)}, {v(vL16)}, {s(rH,4)}, {s(t0)} offen offset:{t*1024} sc1")
        if u < 2: a(f"s_add_u32 {s(t0)}, {s(t0)}, 2048")
    a.label("L_Bh")
    a.reset(); a.vm = ["st"]
    a("s_setprio 2")
    stamp(4)
    vT2, vONE = 3, 5
    srd(a, rW2, pW2, 1376*1024); srd(a, rWO, pWO, 512*1024)
    sW2o, sW2b, sW2e, sHo, sHb, sHe = 84, 85, 86, 87, 88, 89
    a(f"s_mul_i32 {s(t0)}, {s(sROT)}, 11\ns_lshr_b32 {s(t0)}, {s(t0)}, 2\ns_mul_i32 {s(t1)}, {s(sW)}, 22\ns_add_u32 {s(t0)}, {s(t0)}, {s(t1)}")
    a(f"s_lshl_b32 {s(sW2o)}, {s(t0)}, 14\ns_lshl_b32 {s(sW2b)}, {s(t1)}, 14\ns_add_u32 {s(sW2e)}, {s(sW2b)}, {22<<14}")
    a(f"s_lshl_b32 {s(sHo)}, {s(t0)}, 11\ns_lshl_b32 {s(sHb)}, {s(t1)}, 11\ns_add_u32 {s(sHe)}, {s(sHb)}, {22<<11}")
    NS, D2 = 22, 8
    ACC2, HF, W2F = 16, 80, 144
    def w2_issue(sg):
        a(f"s_add_u32 m0, {s(sRING)}, {(sg % D2)*2048}\ns_add_u32 {s(t0)}, {s(sW2o)}, 8192")
        dma(vD, rW2, s(sW2o), ("w2", sg))
        a(f"s_add_u32 m0, {s(sRING)}, {(sg % D2)*2048 + 1024}\ns_add_u32 {s(sW2o)}, {s(sW2o)}, 16384")
        dma(vD, rW2, s(t0), ("w2", sg))
        a(f"s_cmp_eq_u32 {s(sW2o)}, {s(sW2e)}\ns_cselect_b32 {s(sW2o)}, {s(sW2b)}, {s(sW2o)}")
    def h_issue(sg):
        for t in range(2):
            a.vmem(f"buffer_load_dwordx4 {v(HF+8*(sg%D2)+4*t,4)}, {v(vL16)}, {s(rH,4)}, {s(sHo)} offen offset:{t*1024} sc1", ("h", sg))
        a(f"s_add_u32 {s(sHo)}, {s(sHo)}, 2048\ns_cmp_eq_u32 {s(sHo)}, {s(sHe)}\ns_cselect_b32 {s(sHo)}, {s(sHb)}, {s(sHo)}")
    for sg in range(D2): w2_issue(sg)
    a.c("w2 transpose-read: row 4h+r, chunk 4cu+2grp+(c>>1), sub c&1")
    a(f"v_lshrrev_b32 {v(TM)}, 5, v0\nv_bfe_u32 {v(TM+1)}, v0, 2, 2\nv_lshl_add_u32 {v(TM)}, {v(TM)}, 2, {v(TM+1)}\nv_lshlrev_b32 {v(TM)}, 7, {v(TM)}")
    a(f"v_bfe_u32 {v(TM+1)}, v0, 4, 1\nv_lshl_add_u32 {v(TM)}, {v(TM+1)}, 5, {v(TM)}\nv_and_b32 {v(TM+1)}, 3, v0\nv_lshl_add_u32 {v(TM)}, {v(TM+1)}, 3, {v(TM)}")
    a(f"v_and_b32 {v(TM+1)}, 8, v0\nv_lshl_add_u32 {v(TM)}, {v(TM+1)}, 3, {v(TM)}\nv_add_u32 {v(vT2)}, {s(sRING)}, {v(TM)}\nv_xor_b32 {v(vT2+1)}, 64, {v(vT2)}")
    a(f"v_mov_b32 {v(vONE)}, 1\nv_mov_b32 v7, 1\nv_mov_b32 v8, 0\nv_mov_b32 v9, {s(sTAG)}")
    flag_voff(6, TM)
    a(f"s_lshl_b32 {s(t0)}, {s(sTG)}, 10\ns_add_u32 {s(t3)}, {s(t0)}, {FH}\ns_lshl_b32 {s(t0)}, {s(sCG)}, 7\ns_lshl_b32 {s(t1)}, {s(sW)}, 2\ns_add_u32 {s(t0)}, {s(t0)}, {s(t1)}\ns_add_u32 {s(t2)}, {s(t0)}, {s(t3)}")
    lds_wait(vL4, CA_, 8, TM, 1)
    a.wait(vm="st")
    a(f"s_mov_b64 exec, 1\nbuffer_store_dword v9, v8, {s(rWS,4)}, {s(t2)} offen sc1\ns_mov_b64 exec, -1")
    stamp(5)
    spin_init(); a.label("L_hpoll")
    a(f"buffer_load_dword {v(TM)}, v6, {s(rWS,4)}, {s(t3)} offen sc1\ns_waitcnt vmcnt(0)")
    a(f"v_cmp_ne_u32 vcc, {s(sTAG)}, {v(TM)}")
    spin_back("L_hpoll", 4)
    a.reset()
    stamp(6)
    a("s_setprio 0")
    for sg in range(D2): h_issue(sg)
    def w2_pull(sg):
        a.wait(vm=("w2", sg))
        for cu in range(2):
            for rd in range(2):
                a.lds(f"ds_read_b64_tr_b16 {v(W2F+8*(sg&1)+4*cu+2*rd,2)}, {v(vT2+cu)} offset:{(sg%D2)*2048 + rd*1024}", ("t", sg))
    a(f"s_lshl_b32 {s(t4)}, {s(sW)}, 14\ns_add_u32 {s(t4)}, {s(t4)}, {X_}\ns_lshl_b32 {s(t5)}, {s(sW)}, 17\ns_lshl_b32 {s(t3)}, {s(sROT)}, 11")
    def wo_issue():
        a(f"s_add_u32 m0, {s(t4)}, {s(t3)}\ns_lshl3_add_u32 {s(t0)}, {s(t3)}, {s(t5)}")
        dma(vD, rWO, s(t0), "wo")
        a(f"s_add_u32 {s(t3)}, {s(t3)}, 1024\ns_and_b32 {s(t3)}, {s(t3)}, 0x3fff")
    w2_pull(0)
    a.wait(lg=("t", 0))
    w2_issue(D2)
    wo_n = 0
    for sg in range(NS):
        if sg + 1 < NS: w2_pull(sg + 1)
        a.wait(vm=("h", sg))
        for cu in range(2):
            for t in range(2):
                d = ACC2 + 16*(2*cu+t)
                a(f"v_mfma_f32_32x32x16_bf16 {v(d,16)}, {v(W2F+8*(sg&1)+4*cu,4)}, {v(HF+8*(sg%D2)+4*t,4)}, {v(d,16) if sg else 0}")
        if sg + D2 < NS: h_issue(sg + D2)
        if sg + 1 < NS: a.wait(lg=("t", sg + 1))
        if sg + 1 + D2 < NS: w2_issue(sg + 1 + D2)
        else:
            for _ in range(2):
                if wo_n < 16: wo_issue(); wo_n += 1
    assert wo_n == 16
    stamp(7)
    a.c("dump partial sums, reduce across the four B waves into 16-token ownership")
    a(f"s_setprio 2\nv_and_b32 v12, 31, v0\nv_lshlrev_b32 v12, 4, v12\nv_lshrrev_b32 v13, 5, v0\nv_lshl_add_u32 v12, v13, 10, v12\nv_add_u32 v12, {s(sRING)}, v12")
    a(f"v_and_b32 v14, 15, v0\nv_lshrrev_b32 v13, 4, v0\nv_lshlrev_b32 v13, 11, v13\nv_lshl_add_u32 v13, v14, 4, v13")
    a(f"s_lshl_b32 {s(t0)}, {s(sW)}, 8\ns_add_u32 {s(t0)}, {s(t0)}, {RING_}\nv_add_u32 v13, {s(t0)}, v13")
    a(f"s_lshl_b32 {s(t0)}, {s(sW)}, 6\nv_lshl_add_u32 v6, v14, 2, {s(t0)}")
    for cu in range(2):
        for t in range(2):
            for qd in range(4):
                a(f"ds_write_b128 v12, {v(ACC2+16*(2*cu+t)+4*qd,4)} offset:{cu*8192+qd*2048+t*512}")
    a.wait_all(lg=False)
    a(f"ds_add_u32 {v(vL4)}, {v(vONE)} offset:{CB_}")
    a.c("epoch hand-over: the last workgroup to get here stores the new epoch")
    a(f"s_cmp_lg_u32 {s(sW)}, 3\ns_cbranch_scc1 L_B4")
    srd(a, rDBG, pDBG, 256)
    a(f"s_mov_b64 exec, 1\nbuffer_atomic_add v7, v8, {s(rDBG,4)}, 0 offen sc0 sc1\ns_mov_b64 exec, -1")
    a.label("L_B4")
    a.c("wo transpose-read: row 16*(kg>>1) + 4*(kg&1) + r, chunk 4*a2 + c")
    vT3 = 3
    a(f"v_lshrrev_b32 v80, 5, v0\nv_lshlrev_b32 v80, 4, v80\nv_bfe_u32 v81, v0, 2, 3\nv_add_u32 v80, v80, v81\nv_lshlrev_b32 v80, 7, v80")
    a(f"v_and_b32 v81, 3, v0\nv_lshl_add_u32 v80, v81, 4, v80\nv_and_b32 v81, 8, v0\nv_lshl_add_u32 v80, v81, 3, v80")
    a(f"v_add_u32 {v(vT3)}, {X_}, v80\nv_xor_b32 {v(vT3+1)}, 64, {v(vT3)}")
    spin_init(); a.label("L_bsync")
    a(f"ds_read_b32 v80, {v(vL4)} offset:{CB_}\ns_waitcnt lgkmcnt(0)\nv_cmp_gt_i32 vcc, -4, v80")
    spin_back("L_bsync", 1)
    a.reset()
    AO, RT, OF, WOF = 16, 32, 96, 128
    for src in range(4):
        for ac in range(4):
            a.lds(f"ds_read_b128 {v(AO+16*src+4*ac,4)}, v13 offset:{src*16384+(ac>>1)*8192+(ac&1)*1024}", ("r", src))
    a.lds(f"ds_add_u32 {v(vL4)}, {v(vONE)} offset:{CB_}")
    a.lds(f"ds_read_b32 v80, v6 offset:{G1_}", "g1")
    for src in range(1, 4):
        a.wait(lg=("r", src))
        for i in range(0, 16, 2): a(f"v_pk_add_f32 {v(AO+i,2)}, {v(AO+i,2)}, {v(AO+16*src+i,2)}")
    a.wait(lg="g1")
    for i in range(0, 16, 2): a(f"v_pk_mul_f32 {v(AO+i,2)}, {v(AO+i,2)}, v[80:81] op_sel_hi:[1,0]")
    def wo_pull(r):
        for ci in range(8):
            for ac in range(4):
                for rd in range(2):
                    a(f"ds_read_b64_tr_b16 {v(WOF+16*ci+4*ac+2*rd,2)}, {v(vT3+(ac>>1))} offset:{(2*ci+r)*4096+rd*1024+(ac&1)*8}")
    wo_pull(0)
    sOr = 84
    a(f"s_lshl_b32 {s(t0)}, {s(sTG)}, 16\ns_lshl_b32 {s(t1)}, {s(sW)}, 14\ns_add_u32 {s(t0)}, {s(t0)}, {s(t1)}")
    for i in range(4): a(f"s_add_u32 {s(sOr+i)}, {s(t0)}, {OBUF + i*4096}")
    srd(a, rOUT, pOUT, 2048*1024)
    a(f"s_lshl_b32 {s(t1)}, {s(sCG)}, 7\ns_add_u32 {s(t4)}, {s(t0)}, {s(t1)}")
    a(f"v_and_b32 v13, 48, v0\nv_lshl_add_u32 v13, v14, 10, v13\ns_mul_i32 {s(t0)}, {s(sW)}, 768\nv_add_u32 v6, {s(t0)}, {v(vL4)}")
    stamp(8)
    a.c("wait until the partner A wave is past its first o tile")
    spin_init(); a.label("L_r1wait")
    a(f"ds_read_b32 v80, v6 offset:{L_+12*256}\ns_waitcnt lgkmcnt(0)\nv_cmp_eq_u32 vcc, -1, v80")
    spin_back("L_r1wait", 2)
    stamp(9)
    def o_round(r, sleep):
        lbl = f"L_opoll{r}"
        spin_init(); a.label(lbl)
        for ci in range(8):
            a(f"buffer_load_dwordx4 {v(OF+4*ci,4)}, {v(vL16)}, {s(rWS,4)}, {s(sOr+ci//2)} offen offset:{(ci&1)*2048+r*1024} sc1")
        a("s_waitcnt vmcnt(5)")
        a(f"v_max3_u32 v12, {v(OF)}, {v(OF+4)}, {v(OF+8)}\ns_waitcnt vmcnt(3)\nv_max3_u32 v12, v12, {v(OF+12)}, {v(OF+16)}")
        a(f"s_waitcnt vmcnt(1)\nv_max3_u32 v12, v12, {v(OF+20)}, {v(OF+24)}\ns_waitcnt vmcnt(0) lgkmcnt(0)\nv_max_u32 v12, v12, {v(OF+28)}")
        a("v_cmp_eq_u32 vcc, -1, v12")
        spin_back(lbl, sleep)
        if r == 0: a("s_setprio 0")
        for ci in range(8):
            for ac in range(4):
                a(f"v_mfma_f32_16x16x32_bf16 {v(AO+4*ac,4)}, {v(WOF+16*ci+4*ac,4)}, {v(OF+4*ci,4)}, {v(AO+4*ac,4)}")
    o_round(0, 4)
    stamp(10)
    wo_pull(1)
    a("s_setprio 2")
    a(f"s_cmp_lg_u32 {s(sW)}, 3\ns_cbranch_scc1 L_B5")
    a(f"v_readfirstlane_b32 {s(t0)}, v7\ns_nop 3\ns_cmp_lg_u32 {s(t0)}, 255\ns_cbranch_scc1 L_B5")
    a(f"s_mov_b64 exec, 1\nbuffer_store_dword v9, v8, {s(rWS,4)}, 0 offen sc1\ns_mov_b64 exec, -1")
    a.label("L_B5")
    a("s_barrier")
    stamp(11)
    o_round(1, None)
    a("s_nop 4")
    for i in range(8): a(f"v_cvt_pk_bf16_f32 {v(RT+i)}, {v(AO+2*i)}, {v(AO+2*i+1)}")
    a(f"buffer_store_dwordx4 {v(RT,4)}, v13, {s(rOUT,4)}, {s(t4)} offen")
    a(f"buffer_store_dwordx4 {v(RT+4,4)}, v13, {s(rOUT,4)}, {s(t4)} offen offset:64")
    stamp(12); stamp_out()
    if P.get("DIAG"):
        a(f"s_waitcnt lgkmcnt(0)\ns_sub_u32 s94, s94, s92\ns_mul_i32 s94, s94, {P.get('DIAGK',0)}\ns_add_u32 s94, s94, {P['DIAG']}")
        a("L_diag:\ns_memrealtime s[90:91]\ns_waitcnt lgkmcnt(0)\ns_sub_u32 s90, s90, s92\ns_cmp_lt_u32 s90, s94\ns_cbranch_scc1 L_diag")
    a.label("L_end")
    a("s_endpgm")
    for r in range(2): slow_path(f"L_slow{r}", f"L_back{r}", O + 64*r + 48, QF + 16*r + 12, O + 64*r)

    ref = open("cdna_kernels/" + NAME + ".s.ref").read().split("\n")
    head = [l for l in ref if l.startswith(";") and "@launch" not in l and "Override" not in l and "grid=ceil" not in l]
    out = "\n".join(head) + f"\n; @launch grid=(256,1,1) block=(512,1,1) lds={LDS_BYTES}\n"
    out += f""".amdgcn_target "amdgcn-amd-amdhsa--gfx950"
.text
.globl {NAME}_kernel
.p2align 8
.type {NAME}_kernel,@function
{NAME}_kernel:
"""
    out += a.text()
    out += f""".section .rodata,"a"
.p2align 6
.amdhsa_kernel {NAME}_kernel
  .amdhsa_next_free_vgpr 256
  .amdhsa_next_free_sgpr 102
  .amdhsa_accum_offset 256
  .amdhsa_group_segment_fixed_size 0
  .amdhsa_kernarg_size 104
  .amdhsa_user_sgpr_count 2
  .amdhsa_user_sgpr_kernarg_segment_ptr 1
  .amdhsa_system_sgpr_workgroup_id_x 1
  .amdhsa_float_denorm_mode_32 {P.get('DENORM',3)}
.end_amdhsa_kernel
"""
    errs = check_hazards(a.text())
    for e in errs: print("HAZARD need %d have %d:\n   %d: %s\n   %d: %s" % (e[2], e[3], e[0], e[4], e[1], e[5]), file=sys.stderr)
    return out, errs

if __name__ == "__main__":
    kw = {}
    path = "cdna_kernels/" + NAME + ".s"
    for arg in sys.argv[1:]:
        if "=" in arg:
            k, val = arg.split("=", 1)
            kw[k] = int(val) if val.lstrip("-").isdigit() else val
        else: path = arg
    out, errs = gen(**kw)
    open(path, "w").write(out)
    print("wrote", path, len(out.split("\n")), "lines;", len(errs), "hazards")
```

```python
import sys, struct, math
from asmlib import Asm, v, s, check_hazards

NAME = "gated_mix__grouped_kv_mqa__glu_gated_swiglu__prompt"
def f32(x): return "0x%08x" % struct.unpack("<I", struct.pack("<f", x))[0]
LOG2E = math.log2(math.e)

DEFAULT = dict(NPF=1, DH=8, FLAG1=1, ROTM=6, STAMP=0, MAP="4x2", FORCE_SLOW=0, LO=-40, HI=60, SPIN=200000, CPF=1, TLB=1, TLBN=32, TLBL="0x48c9a761")

O1_, L_, GW_, G_, CA_, CB_, X_, RING_ = 0, 24832, 30976, 32000, 32256, 32512, 32768, 98304
O2_, SB_ = X_, X_ + 24576
QG = 7168
LDS_BYTES = 163840
W3OFF, W3OFF0 = 3200, 12416
SLOTOFF = (8192, 0)
FKV, FH, KV, OBUF, HBUF, STAMPS = 0x1000, 0x2000, 0x10000, 0x40000, 0x240000, 0xA00000
JS = 44*1024
WS_BYTES = 0xB00000
IDX = 0xDDDDDDDD
pX, pWQ, pWK, pWV, pWO, pW1, pW3, pW2, pGW, pOUT, pDBG, pWS = 4, 6, 8, 10, 12, 16, 18, 20, 22, 24, 26, 28
sTAG, sSPIN = 30, 31
rX, rA, rB, rWS, rH, rW2, rWO, rOUT, rDBG = 32, 36, 40, 44, 48, 52, 56, 60, 64
sTG, sCG, sROT, sW, sWV = 68, 69, 70, 71, 72
t0, t1, t2, t3, t4, t5, sJS = 73, 74, 75, 76, 77, 78, 79
sC0 = 96
VST = 15

def srd(a, r, p, nbytes, off=None):
    if off is None:
        a(f"s_mov_b32 {s(r)}, {s(p)}\ns_mov_b32 {s(r+1)}, {s(p+1)}")
    else:
        a(f"s_add_u32 {s(r)}, {s(p)}, {off}\ns_addc_u32 {s(r+1)}, {s(p+1)}, 0")
    a(f"s_mov_b32 {s(r+2)}, {nbytes}\ns_mov_b32 {s(r+3)}, 0x20000")

def gen(**kw):
    P = dict(DEFAULT); P.update(kw)
    a = Asm()
    cur = {"prio": 0}
    XM = "" if P.get("LOCAL") else "sc1"
    tail = []
    def prio(p): cur["prio"] = p; a(f"s_setprio {p}")
    def stamp(k):
        if P.get("DIAG") and k == P.get("DIAGM", 0):
            a("s_memrealtime s[94:95]"); a.wait_all(vm=False)
        if P["STAMP"]:
            a("s_memrealtime s[100:101]\ns_memtime s[14:15]\ns_setprio 3"); a.wait_all(vm=False)
            a(f"v_writelane_b32 v{VST}, s100, {k}\nv_writelane_b32 v{VST}, s14, {k+16}\ns_setprio {cur['prio']}")
    def cyc(k):
        if P["STAMP"]:
            a("s_memtime s[100:101]\ns_setprio 3"); a.wait_all(vm=False)
            a(f"v_writelane_b32 v{VST}, s100, {k}\ns_setprio {cur['prio']}")
    def stamp_out():
        if P["STAMP"]:
            cyc(15)
            a(f"s_lshl_b32 {s(t0)}, s2, 3\ns_add_u32 {s(t0)}, {s(t0)}, {s(sWV)}\ns_lshl_b32 {s(t0)}, {s(t0)}, 8\ns_add_u32 {s(t0)}, {s(t0)}, {STAMPS}")
            a(f"v_lshlrev_b32 v8, 2, v0\nbuffer_store_dword v{VST}, v8, {s(rWS,4)}, {s(t0)} offen")
    def dma(voff, r, soff, tag=None, mod="", pol=""):
        a.vmem(f"buffer_load_dwordx4 {v(voff)}, {s(r,4)}, {soff} offen {mod}{pol}lds", tag)
    NT = lambda k: "nt " if k in P.get("NT", "") else ""
    def spin_init(): a(f"s_mov_b32 {s(sSPIN)}, {P['SPIN']}")
    def spin_back(lbl, sleep=None):
        out = a.newlabel("L_ok")
        a(f"s_cbranch_vccz {out}")
        if sleep: a(f"s_sleep {sleep}")
        a(f"s_sub_u32 {s(sSPIN)}, {s(sSPIN)}, 1\ns_cmp_lg_u32 {s(sSPIN)}, 0\ns_cbranch_scc1 {lbl}")
        a.label(out)
    def lds_wait(addr, off, count, tmp, sleep=None):
        lbl = a.newlabel("L_lw"); spin_init(); a.label(lbl)
        a(f"ds_read_b32 {v(tmp)}, {v(addr)} offset:{off}"); a.wait_all(vm=False)
        a(f"v_cmp_gt_i32 vcc, {count}, {v(tmp)}")
        spin_back(lbl, sleep)
    def tag_from_epoch():
        a(f"s_mul_i32 {s(sTAG)}, {s(sTAG)}, 0x9E3779B1\ns_add_u32 {s(sTAG)}, {s(sTAG)}, 0x7F4A7C15")
    def x16_addr(dst, tmp):
        a.c("x fragment address (16x16x32 operand): n*128 + ((G ^ (n>>1))*16)")
        a(f"v_and_b32 {v(tmp)}, 15, v0\nv_lshrrev_b32 {v(dst)}, 1, {v(tmp)}\nv_lshrrev_b32 {v(tmp+1)}, 4, v0\nv_xor_b32 {v(dst)}, {v(dst)}, {v(tmp+1)}")
        a(f"v_lshlrev_b32 {v(dst)}, 4, {v(dst)}\nv_lshl_add_u32 {v(dst)}, {v(tmp)}, 7, {v(dst)}")
    def x32_addr(dst, tmp, base):
        a.c("x fragment address (32x32x16 operand), four k-steps of a 64-wide block")
        a(f"v_and_b32 {v(dst)}, 31, v0\nv_bfe_u32 {v(tmp)}, v0, 1, 3\nv_lshrrev_b32 {v(tmp+1)}, 5, v0\nv_xor_b32 {v(tmp)}, {v(tmp)}, {v(tmp+1)}")
        a(f"v_lshlrev_b32 {v(tmp)}, 4, {v(tmp)}\nv_lshl_add_u32 {v(dst)}, {v(dst)}, 7, {v(tmp)}\nv_add_u32 {v(dst)}, {base}, {v(dst)}")
        for j in range(1, 4): a(f"v_xor_b32 {v(dst+j)}, {32*j}, {v(dst)}")
    def obuf_soff(dst):
        a.c("o tile address: OBUF + tg*64K + t*32K + 2cg*1K + hh_lo*512")
        a(f"s_lshl_b32 {s(dst)}, {s(sTG)}, 16\ns_lshl_b32 {s(t0)}, {s(sCG)}, 11\ns_add_u32 {s(dst)}, {s(dst)}, {s(t0)}\ns_add_u32 {s(dst)}, {s(dst)}, {OBUF}")
        a(f"s_and_b32 {s(t0)}, {s(sW)}, 1\ns_lshl_b32 {s(t0)}, {s(t0)}, 15\ns_add_u32 {s(dst)}, {s(dst)}, {s(t0)}\ns_lshr_b32 {s(t0)}, {s(sW)}, 1\ns_lshl_b32 {s(t0)}, {s(t0)}, 9\ns_add_u32 {s(dst)}, {s(dst)}, {s(t0)}")

    if P.get("DIAG"): a("s_memrealtime s[92:93]\ns_memrealtime s[94:95]")
    a("s_cmp_ge_u32 s2, 256\ns_cbranch_scc1 L_end")
    a("s_load_dwordx16 s[4:19], s[0:1], 0\ns_load_dwordx8 s[20:27], s[0:1], 64\ns_load_dwordx2 s[28:29], s[0:1], 96")
    a("v_lshrrev_b32 v1, 6, v0")
    if P["CPF"]:
        a.c("pull this kernel's code into L2 (read only): one line per wave")
        a(f"s_getpc_b64 {s(t1,2)}\ns_lshr_b32 {s(t0)}, s2, 3\ns_lshl_b32 {s(t0)}, {s(t0)}, 10")
        a(f"v_lshl_add_u32 v16, v1, 7, {s(t0)}\nv_min_u32 v16, L_last-{NAME}_kernel-64, v16")
        a(f"v_mov_b32 v17, {s(t2)}\nv_add_co_u32 v16, vcc, {s(t1)}, v16\ns_nop 1\nv_addc_co_u32 v17, vcc, 0, v17, vcc")
        a("global_load_dword v127, v[16:17], off")
    a(f"v_and_b32 v0, 63, v0\nv_readfirstlane_b32 {s(sWV)}, v1")
    if P["MAP"] == "tok":
        a(f"s_and_b32 {s(sTG)}, s2, 31\ns_lshr_b32 {s(sCG)}, s2, 5")
        a(f"s_lshr_b32 {s(t0)}, {s(sTG)}, 3\ns_lshl_b32 {s(t0)}, {s(t0)}, 1\ns_add_u32 {s(sROT)}, {s(t0)}, {s(sTG)}\ns_add_u32 {s(sROT)}, {s(sROT)}, {s(sCG)}")
    elif P["MAP"] == "col":
        a(f"s_and_b32 {s(sCG)}, s2, 7\ns_lshr_b32 {s(sTG)}, s2, 3\ns_add_u32 {s(sROT)}, {s(sTG)}, {s(sCG)}")
    elif P["MAP"] == "4x2":
        a(f"s_lshr_b32 {s(t0)}, s2, 6\ns_and_b32 {s(t1)}, s2, 4\ns_add_u32 {s(sCG)}, {s(t0)}, {s(t1)}")
        a(f"s_bfe_u32 {s(t2)}, s2, 0x30003\ns_lshl_b32 {s(t0)}, {s(t0)}, 1\ns_add_u32 {s(sROT)}, {s(t0)}, {s(t2)}")
        a(f"s_lshl_b32 {s(t0)}, {s(t2)}, 2\ns_and_b32 {s(t1)}, s2, 3\ns_add_u32 {s(sTG)}, {s(t0)}, {s(t1)}")
    elif P["MAP"] == "2x4":
        a(f"s_lshr_b32 {s(t0)}, s2, 7\ns_and_b32 {s(t1)}, s2, 6\ns_add_u32 {s(sCG)}, {s(t0)}, {s(t1)}")
        a(f"s_bfe_u32 {s(t2)}, s2, 0x40003\ns_lshl_b32 {s(t0)}, {s(t0)}, 2\ns_add_u32 {s(sROT)}, {s(t0)}, {s(t2)}\ns_lshr_b32 {s(t1)}, {s(sCG)}, 1\ns_add_u32 {s(sROT)}, {s(sROT)}, {s(t1)}")
        a(f"s_lshl_b32 {s(t0)}, {s(t2)}, 1\ns_and_b32 {s(t1)}, s2, 1\ns_add_u32 {s(sTG)}, {s(t0)}, {s(t1)}")
    if P["TLB"]:
        a(f"s_lshl_b32 {s(t0)}, {s(sWV)}, 2\ns_lshr_b32 {s(t0)}, {P['TLBL']}, {s(t0)}\ns_and_b32 {s(t0)}, {s(t0)}, 15\ns_lshl_b32 {s(t0)}, {s(t0)}, 3\ns_load_dwordx2 s[90:91], s[0:1], {s(t0)}")
    a(f"s_and_b32 {s(sROT)}, {s(sROT)}, {P.get('ROTM', 7)}\ns_and_b32 {s(sW)}, {s(sWV)}, 3\ns_and_b32 {s(sJS)}, {s(sCG)}, 3")
    vXs, vKs = 1, 3
    a.c("x tile source: row lane>>3, slot lane&7 holds chunk slot ^ ((token>>1)&7)")
    a("v_lshrrev_b32 v4, 3, v0\nv_and_b32 v5, 7, v0\nv_lshrrev_b32 v6, 4, v0\nv_xor_b32 v5, v5, v6\nv_lshlrev_b32 v5, 4, v5\nv_lshl_add_u32 v4, v4, 10, v5")
    a(f"s_lshl_b32 {s(t0)}, {s(sTG)}, 2\ns_add_u32 {s(t0)}, {s(t0)}, {s(sJS)}\ns_lshl_b32 {s(t0)}, {s(t0)}, 14\nv_add_u32 {v(vXs)}, {s(t0)}, v4\nv_xor_b32 {v(vXs+1)}, 0x2040, {v(vXs)}")
    a.c("32-byte-row source: slot rho=lane>>1 holds row rho ^ (4*((rho>>3)&1))")
    a(f"v_lshrrev_b32 v5, 1, v0\nv_and_b32 v5, 8, v5\nv_xor_b32 v5, v5, v0\nv_lshlrev_b32 {v(vKs)}, 4, v5")
    a(f"s_add_u32 {s(t0)}, {s(sWV)}, {s(sROT)}\ns_and_b32 {s(t0)}, {s(t0)}, 7\ns_lshl_b32 {s(t1)}, {s(t0)}, 7\ns_lshl_b32 {s(t2)}, {s(t0)}, 11")
    a(f"s_lshl_b32 {s(t3)}, {s(sWV)}, 2\ns_add_u32 {s(t3)}, {s(t3)}, {s(sJS)}\ns_lshl_b32 {s(t3)}, {s(t3)}, 11\ns_lshl_b32 {s(t4)}, {s(sWV)}, 11")
    if P["STAMP"]: a(f"v_mov_b32 v{VST}, 0")
    a(f"s_mov_b32 {s(rX+2)}, {2048*1024}\ns_mov_b32 {s(rX+3)}, 0x20000\ns_mov_b32 {s(rOUT+2)}, 16384\ns_mov_b32 {s(rOUT+3)}, 0x20000")
    a(f"s_add_u32 m0, {s(t3)}, {X_}\ns_cmp_ge_u32 {s(sCG)}, 4")
    a("s_waitcnt lgkmcnt(0)")
    stamp(0); cyc(14)
    a(f"s_mov_b32 {s(rX)}, {s(pX)}\ns_mov_b32 {s(rX+1)}, {s(pX+1)}")
    dma(vXs, rX, s(t1), pol=NT('x'))
    a(f"s_cselect_b32 {s(rOUT)}, {s(pWV)}, {s(pWK)}\ns_cselect_b32 {s(rOUT+1)}, {s(pWV+1)}, {s(pWK+1)}")
    a(f"s_add_u32 m0, {s(t3)}, {X_+1024}\ns_load_dword {s(sTAG)}, {s(pWS,2)}, 0")
    dma(vXs+1, rX, s(t1), pol=NT('x'))
    a(f"s_mov_b32 m0, {s(t4)}\ns_cmp_ge_u32 s2, {P['TLBN']}")
    dma(vKs, rOUT, s(t2)); dma(vKs, rOUT, s(t2), mod="offset:1024 ")
    if P["TLB"]:
        a.c("touch the other buffers once (one per wave) so that their address translations are fetched early")
        a("s_cbranch_scc1 L_notlb\ns_load_dword s3, s[90:91], 0")
        a.label("L_notlb")
    srd(a, rWS, pWS, WS_BYTES)
    a(f"s_cmp_ge_u32 {s(sWV)}, 4\ns_cbranch_scc1 L_B")

    a.c("---------------- A waves: wq loads and set-up while the tiles are in flight")
    vIDX, vKo, vVo, vWO, vWL, vRO, vRL, vG, vOB, vL4 = 1, 2, 3, 4, 5, 6, 9, 12, 13, 14
    S0, S1, KVR, QF, O = 16, 32, 48, 96, 128
    sKVo, sOB, sQo, sM0 = 80, 81, 82, 83
    vXa, vTq, vD, vFl = 32, 36, 37, 38
    srd(a, rA, pWQ, 512*1024)
    a.c("wq source: 128-byte rows, slot holds chunk slot ^ (4*((row>>1)&1))")
    a(f"v_lshrrev_b32 v16, 2, v0\nv_and_b32 v16, 4, v16\nv_and_b32 v17, 7, v0\nv_xor_b32 v16, v16, v17\nv_lshlrev_b32 v16, 4, v16\nv_lshrrev_b32 v17, 3, v0\nv_lshl_add_u32 v16, v17, 10, v16")
    a(f"s_lshl_b32 {s(t0)}, {s(sCG)}, 7\nv_add_u32 {v(vD)}, {s(t0)}, v16")
    a(f"s_lshl_b32 {s(sQo)}, {s(sROT)}, 3\ns_add_u32 {s(sQo)}, {s(sQo)}, {s(sW)}\ns_lshl_b32 {s(sQo)}, {s(sQo)}, 13\ns_lshl_b32 {s(sM0)}, {s(sW)}, 10")
    def wq_lds(kb): return RING_ + (kb & 3)*16384 + (kb >> 2)*8192
    def wq_issue(kb):
        a(f"s_add_u32 m0, {s(sM0)}, {wq_lds(kb)}\ns_add_u32 {s(t0)}, {s(sQo)}, 0x8000")
        dma(vD, rA, s(sQo), pol=NT('q'))
        a(f"s_add_u32 m0, {s(sM0)}, {wq_lds(kb)+4096}\ns_add_u32 {s(sQo)}, {s(sQo)}, 0x10000")
        dma(vD, rA, s(t0), pol=NT('q'))
        a(f"s_and_b32 {s(sQo)}, {s(sQo)}, 0x7ffff")
    a(f"s_and_b32 {s(t0)}, {s(sW)}, 1\ns_lshl_b32 {s(t0)}, {s(t0)}, 12\ns_add_u32 {s(t0)}, {s(t0)}, {X_}")
    x32_addr(vXa, 16, s(t0))
    a.c("wq transpose-read: row 8h+r, chunk 4u+2grp+(c&1), sub c>>1")
    a(f"v_lshrrev_b32 v16, 5, v0\nv_bfe_u32 v17, v0, 2, 2\nv_lshl_add_u32 v16, v16, 3, v17\nv_lshlrev_b32 v16, 7, v16")
    a(f"v_bfe_u32 v17, v0, 4, 1\nv_lshl_add_u32 v16, v17, 5, v16\nv_and_b32 v17, 1, v0\nv_lshl_add_u32 v16, v17, 4, v16\nv_and_b32 v17, 2, v0\nv_lshl_add_u32 v16, v17, 2, v16")
    a(f"v_and_b32 v17, 8, v0\nv_lshl_add_u32 v16, v17, 3, v16\ns_lshr_b32 {s(t0)}, {s(sW)}, 1\ns_lshl_b32 {s(t0)}, {s(t0)}, 6\nv_xor_b32 v16, {s(t0)}, v16\nv_add_u32 {v(vTq)}, {RING_}, v16")
    a(f"v_mov_b32 {v(vIDX)}, {hex(IDX)}\nv_lshlrev_b32 {v(vL4)}, 2, v0\nv_lshlrev_b32 v16, 4, v0")
    a(f"s_lshl_b32 {s(t0)}, {s(sW)}, 15\ns_add_u32 {s(t0)}, {s(t0)}, {KV}\nv_add_u32 {v(vKo)}, {s(t0)}, v16")
    a(f"v_and_b32 v17, 15, v0\nv_lshlrev_b32 v17, 4, v17\nv_lshrrev_b32 v18, 5, v0\nv_lshl_add_u32 v17, v18, 8, v17\nv_add_u32 {v(vVo)}, {s(t0)}, v17")
    a(f"v_and_b32 v18, 16, v0\nv_lshl_add_u32 {v(vOB)}, v18, 10, v17")
    a(f"s_mul_i32 {s(t0)}, {s(sW)}, 6144\nv_add_u32 {v(vWO)}, {s(t0)}, v16\ns_mul_i32 {s(t0)}, {s(sW)}, 768\nv_add_u32 {v(vWL)}, {s(t0)}, {v(vL4)}")
    for i in range(3):
        a(f"s_add_u32 {s(t0)}, {s(sW)}, {3-i}\ns_and_b32 {s(t0)}, {s(t0)}, 3\ns_mul_i32 {s(t0)}, {s(t0)}, 3\ns_add_u32 {s(t0)}, {s(t0)}, {i}")
        a(f"s_lshl_b32 {s(t1)}, {s(t0)}, 11\nv_add_u32 {v(vRO+i)}, {s(t1)}, v16\ns_lshl_b32 {s(t1)}, {s(t0)}, 8\nv_add_u32 {v(vRL+i)}, {s(t1)}, {v(vL4)}")
    a(f"s_lshl_b32 {s(t0)}, {s(sW)}, 14\ns_add_u32 {s(t0)}, {s(t0)}, {RING_+QG}\nv_add_u32 v39, {s(t0)}, v16")
    obuf_soff(sOB)
    a(f"s_lshr_b32 {s(sKVo)}, s2, 3\ns_lshl_b32 {s(sKVo)}, {s(sKVo)}, 11\ns_and_b32 {s(sKVo)}, {s(sKVo)}, 0x7fff")
    a(f"s_mov_b32 {s(sC0)}, 0xffff\ns_mov_b32 {s(sC0+1)}, 0xffff\ns_mov_b32 {s(sC0+2)}, {f32(0.25*LOG2E)}\ns_mov_b32 {s(sC0+3)}, {f32(0.25*LOG2E)}")
    a(f"s_and_b32 {s(t0)}, {s(sW)}, 1\ns_lshl_b32 {s(t0)}, {s(t0)}, 7\nv_and_b32 {v(vG)}, 31, v0\nv_lshl_add_u32 {v(vG)}, {v(vG)}, 2, {s(t0)}")
    a(f"v_lshrrev_b32 {v(vFl)}, 3, v0\nv_and_b32 v17, 7, v0\nv_lshlrev_b32 v17, 2, v17\nv_lshl_add_u32 {v(vFl)}, {v(vFl)}, 7, v17\ns_add_u32 {s(t3)}, {s(sM0)}, {FKV}")
    a("v_mov_b32 v17, -1")
    for r in range(2):
        for i in range(3): a(f"ds_write_b32 {v(vWL)}, v17 offset:{L_+(12*r+i)*256}")
    a.c("V operand padding rows: ones in rows 16 and 20 (row sums), zero elsewhere")
    a(f"v_and_b32 v19, 27, v0\nv_cmp_eq_u32 vcc, 16, v19\nv_mov_b32 v18, 0x3f803f80\ns_nop 0\nv_cndmask_b32 v19, 0, v18, vcc")
    for sl in range(4):
        for i in range(8): a(f"v_mov_b32 {v(KVR+12*sl+4+i)}, v19")
    for i in range(8): a(f"v_mov_b32 {v(S1+8+i)}, 0")
    for c in range(8): a(f"v_mfma_f32_32x32x8bf16_1k {v(O+16*c,16)}, {v(S1+8,2)}, {v(S1+8,2)}, 0")
    NQ0 = P.get("NQ0", 2)
    for kb in range(NQ0): wq_issue(kb)
    a(f"s_waitcnt vmcnt({2*NQ0}) lgkmcnt(0)\ns_barrier")
    cyc(32)
    for kb in range(NQ0, 8): wq_issue(kb)
    a("s_waitcnt vmcnt(0) lgkmcnt(0)")
    cyc(33)
    a("s_barrier")
    a.reset()
    tag_from_epoch()
    stamp(1)
    QA = 16
    def q_read(ks):
        st = QF + 8*(ks % 4); kb, j = ks >> 2, ks & 3
        a.lds(f"ds_read_b128 {v(st,4)}, {v(vXa+j)} offset:{kb*8192}", ("f", ks))
        for rd in range(2):
            a.lds(f"ds_read_b64_tr_b16 {v(st+4+2*rd,2)}, {v(vTq)} offset:{wq_lds(kb)-RING_ + j*2048 + rd*512}", ("f", ks))
    def q_mfma(ks):
        st = QF + 8*(ks % 4)
        a.wait(lg=("f", ks))
        a(f"v_mfma_f32_32x32x16_bf16 {v(QA,16)}, {v(st+4,4)}, {v(st,4)}, {v(QA,16) if ks else 0}")
    for ks in range(3): q_read(ks)
    for ks in range(32):
        if ks + 3 == 16: a("s_barrier")
        if ks + 3 < 32: q_read(ks + 3)
        if ks + 3 == 32:
            a(f"buffer_load_dword {v(vD)}, {v(vFl)}, {s(rWS,4)}, {s(t3)} offen sc1")
            a.wait_all(vm=False); a("s_barrier")
        q_mfma(ks)
    stamp(2)
    for i in range(4):
        a(f"s_add_u32 {s(t0)}, {s(sW)}, {i+1}\ns_and_b32 {s(t1)}, {s(t0)}, 1\ns_lshl_b32 {s(t1)}, {s(t1)}, 14\ns_and_b32 {s(t0)}, {s(t0)}, 2\ns_lshl_b32 {s(t0)}, {s(t0)}, 12")
        a(f"s_add_u32 {s(t0)}, {s(t0)}, {s(t1)}\ns_add_u32 {s(t0)}, {s(t0)}, {RING_+QG}\nv_lshl_add_u32 {v(vXa+i)}, v0, 4, {s(t0)}")
        if i == 1:
            for k in range(0, 16, 2): a(f"v_pk_mul_f32 {v(QA+k,2)}, {v(QA+k,2)}, {s(sC0+2,2)}")
            for k in range(8): a(f"v_cvt_pk_bf16_f32 {v(QA+k)}, {v(QA+2*k)}, {v(QA+2*k+1)}")
            a(f"v_mov_b32 v24, 1\nds_write_b128 v39, {v(QA,4)}\nds_write_b128 v39, {v(QA+4,4)} offset:8192\nds_add_u32 {v(vL4)}, v24 offset:{CA_}")
    stamp(3)
    spin_init(); a("s_branch L_kvchk"); a.label("L_kvpoll")
    a(f"buffer_load_dword {v(vD)}, {v(vFl)}, {s(rWS,4)}, {s(t3)} offen sc1")
    a.label("L_kvchk")
    a(f"s_waitcnt vmcnt(0)\nv_cmp_ne_u32 vcc, {s(sTAG)}, {v(vD)}")
    spin_back("L_kvpoll")
    stamp(4)
    def kv_load(sl):
        a(f"buffer_load_dwordx4 {v(KVR+12*sl,4)}, {v(vKo)}, {s(rWS,4)}, {s(sKVo)} offen sc1")
        a(f"s_mov_b64 exec, {s(sC0,2)}")
        a(f"buffer_load_dwordx4 {v(KVR+12*sl+4,4)}, {v(vVo)}, {s(rWS,4)}, {s(sKVo)} offen offset:1024 sc1")
        a(f"buffer_load_dwordx4 {v(KVR+12*sl+8,4)}, {v(vVo)}, {s(rWS,4)}, {s(sKVo)} offen offset:1536 sc1")
        a(f"s_mov_b64 exec, -1\ns_add_u32 {s(sKVo)}, {s(sKVo)}, 2048\ns_and_b32 {s(sKVo)}, {s(sKVo)}, 0x7fff")
    for sl in range(3): kv_load(sl)
    lds_wait(vL4, CA_, 4, 25)
    for i in range(4):
        a(f"ds_read_b128 {v(QF+4*i,4)}, {v(vXa+i)}\nds_read_b128 {v(QF+16+4*i,4)}, {v(vXa+i)} offset:32768")
    a(f"ds_add_u32 {v(vL4)}, v24 offset:{CA_}")
    prio(1)
    QK = lambda dst, c, k: f"v_mfma_f32_32x32x16_bf16 {v(dst,16)}, {v(KVR+12*k,4)}, {v(QF+4*c,4)}, 0"
    PV0 = lambda src, c, k: f"v_smfmac_f32_32x32x32_bf16 {v(O+16*c,16)}, {v(KVR+12*k+4,4)}, {v(src,8)}, {v(vIDX)}"
    PV1 = lambda src, c, k: f"v_smfmac_f32_32x32x32_bf16 {v(O+16*c,16)}, {v(KVR+12*k+8,4)}, {v(src+8,8)}, {v(vIDX)}"
    p1, pq, p0 = P.get("P1", 2), P.get("PQ", 5), P.get("P0", 10)
    def tile(n, prev, cur_, nxt, ev):
        cb, ob = (S0, S1) if n % 2 == 0 else (S1, S0)
        for k in range(16):
            for f in ev.get(k, []): f()
            if k == p1: a(PV1(ob, *prev))
            if k == pq and nxt: a(QK(ob, *nxt))
            if k == p0: a(PV0(cb, *cur_))
            a(f"v_exp_f32 {v(cb+k)}, {v(cb+k)}")
    def flush(c):
        r, i = c >> 2, c & 3
        ob = (O1_, O2_)[r] + i*2048
        a(f"ds_write_b128 {v(vWO)}, {v(O+16*c,4)} offset:{ob}\nds_write_b128 {v(vWO)}, {v(O+16*c+4,4)} offset:{ob+1024}")
        a(f"ds_write_b32 {v(vWL)}, {v(O+16*c+8)} offset:{L_+(12*r+i)*256}")
    def gather(r):
        T = O + 64*r
        for i in range(3): a(f"ds_read_b32 {v(T+16*i+8)}, {v(vRL+i)} offset:{L_+12*r*256}")
        for i in range(3):
            for hf in range(2): a(f"ds_read_b128 {v(T+16*i+4*hf,4)}, {v(vRO+i)} offset:{(O1_, O2_)[r]+hf*1024}")
    def gcheck(r):
        T = O + 64*r
        a(f"s_waitcnt lgkmcnt(0)\nv_max3_u32 {v(T+10)}, {v(T+8)}, {v(T+24)}, {v(T+40)}\nv_cmp_eq_u32 vcc, -1, {v(T+10)}")
    def acc9(d, x):
        for i in range(0, 8, 2): a(f"v_pk_add_f32 {v(d+i,2)}, {v(d+i,2)}, {v(x+i,2)}")
        a(f"v_add_f32 {v(d+8)}, {v(d+8)}, {v(x+8)}")
    def finish(r):
        T = O + 64*r; W = T + 48
        gcheck(r)
        a(f"s_cbranch_vccnz L_retry{r}"); a.label(f"L_got{r}")
        acc9(T, T+16); acc9(T, T+32); acc9(W, T)
        lo = (127 + P["LO"]) << 23; hi = (127 + P["HI"]) << 23
        a.c("row sums outside the safe range: redo this tile with the true row maximum")
        a(f"v_subrev_u32 {v(T)}, {hex(lo)}, {v(W+8)}\nv_cmp_le_u32 vcc, {hex(0 if P['FORCE_SLOW'] else hi-lo)}, {v(T)}")
        a(f"s_cbranch_vccnz L_slow{r}"); a.label(f"L_back{r}")
        a(f"v_rcp_f32 {v(T)}, {v(W+8)}\ns_nop 0\nv_mul_f32 {v(T)}, {v(T)}, {v(vVo)}")
        for i in range(0, 8, 2): a(f"v_pk_mul_f32 {v(W+i,2)}, {v(W+i,2)}, {v(T,2)} op_sel_hi:[1,0]")
        for i in range(4): a(f"v_cvt_pk_bf16_f32 {v(W+i)}, {v(W+2*i)}, {v(W+2*i+1)}")
        a(f"v_min_u32 {v(W)}, -2, {v(W)}")
        a(f"buffer_store_dwordx4 {v(W,4)}, {v(vOB)}, {s(rWS,4)}, {s(sOB)} offen offset:{r*1024} {XM}")
    def b_read(): a(f"ds_read_b32 {v(vKo)}, {v(vL4)} offset:{CB_}\nds_read_b32 {v(vVo)}, {v(vG)} offset:{G_}")
    def b_check():
        a(f"s_waitcnt vmcnt(0) lgkmcnt(0)\nv_cmp_gt_i32 vcc, 0, {v(vKo)}\ns_cbranch_vccnz L_bretry"); a.label("L_bgot")
    a("s_waitcnt vmcnt(6) lgkmcnt(0)")
    if P.get("NOATT"): a("s_sleep 127\ns_sleep 127\ns_sleep 127")
    a(QK(S0, 0, 0)); a(f"s_mov_b32 {s(t0)}, 3\ns_nop 10")
    stamp(5)
    a(".p2align 3")
    a.label("L_att")
    seq = [(c, k) for k in range(4) for c in range(8)]
    for n, cu in enumerate(seq):
        ev = {}
        if cu[0] == 0: ev[12] = [lambda: kv_load((cu[1] + 3) % 4)]
        if cu[0] == 7: ev[pq] = [lambda: a("s_waitcnt vmcnt(6)")]
        tile(n, seq[n-1], cu, seq[(n+1) % 32], ev)
    a(f"s_sub_u32 {s(t0)}, {s(t0)}, 1\ns_cmp_lg_u32 {s(t0)}, 0\ns_cbranch_scc1 L_att")
    stamp(6)
    seq = [(0,0),(0,1),(0,2),(1,0),(1,1),(1,2),(0,3),(1,3)] + [(c, k) for c in range(2, 8) for k in range(4)]
    for n, cu in enumerate(seq):
        ev = {}
        prev = seq[n-1] if n else (7, 3)
        if n == 0: ev[pq] = [lambda: a("s_waitcnt vmcnt(0)")]; ev[12] = [lambda: kv_load(3), b_read]
        if cu == (1, 2): ev[pq] = [b_check]
        if n and prev[1] == 3:
            ev[13] = [(lambda: finish(0)) if prev[0] == 3 else (lambda: flush(prev[0]))]
        if cu in ((3, 3), (7, 3)): ev[7] = [lambda: gather(cu[0] >> 2)]
        tile(n, prev, cu, seq[n+1] if n < 31 else None, ev)
    a("s_nop 1")
    a(PV1(S1, 7, 3))
    finish(1)
    stamp(7)
    a("s_barrier")
    stamp_out()
    a("s_endpgm")
    def a_tail():
        for r in range(2):
            a.label(f"L_retry{r}"); spin_init(); a.label(f"L_retryl{r}")
            gather(r); gcheck(r); spin_back(f"L_retryl{r}")
            a(f"s_branch L_got{r}")
        a.label("L_bretry"); spin_init(); a.label("L_bretryl")
        b_read(); a(f"s_waitcnt lgkmcnt(0)\nv_cmp_gt_i32 vcc, 0, {v(vKo)}"); spin_back("L_bretryl", 1)
        a("s_branch L_bgot")
    a_tail()

    def slow_path(lbl, back, T, Qf, R):
        Kf, V0, V1, S, M, vk, vv, tm = R, R+4, R+8, R+12, R+28, R+29, R+30, R+31
        a.label(lbl)
        a(f"v_lshlrev_b32 {v(vk)}, 4, v0\nv_lshrrev_b32 {v(vv)}, 5, v0\nv_lshlrev_b32 {v(vv)}, 8, {v(vv)}")
        a(f"v_and_b32 {v(tm)}, 15, v0\nv_lshl_add_u32 {v(vv)}, {v(tm)}, 4, {v(vv)}")
        a(f"v_mov_b32 {v(M)}, 0xff800000")
        for i in range(8): a(f"v_mov_b32 {v(V0+i)}, 0x3f803f80")
        for i in range(16): a(f"v_mov_b32 {v(T+i)}, 0")
        a(f"s_mov_b32 {s(t4)}, {KV}")
        l1 = a.newlabel("L_sm"); a.label(l1)
        a(f"buffer_load_dwordx4 {v(Kf,4)}, {v(vk)}, {s(rWS,4)}, {s(t4)} offen sc1\ns_waitcnt vmcnt(0)")
        a(f"v_mfma_f32_32x32x16_bf16 {v(S,16)}, {v(Kf,4)}, {v(Qf,4)}, 0\ns_nop 15")
        for i in range(8): a(f"v_max3_f32 {v(M)}, {v(M)}, {v(S+2*i)}, {v(S+2*i+1)}")
        a(f"s_add_u32 {s(t4)}, {s(t4)}, 2048\ns_cmp_lt_u32 {s(t4)}, {KV+64*2048}\ns_cbranch_scc1 {l1}")
        a(f"v_mov_b32 {v(tm)}, {v(M)}\ns_nop 1\nv_permlane32_swap_b32 {v(tm)}, {v(M)}\ns_nop 1\nv_max_f32 {v(M)}, {v(M)}, {v(tm)}")
        a(f"s_mov_b32 {s(t4)}, {KV}")
        l2 = a.newlabel("L_sp"); a.label(l2)
        a(f"buffer_load_dwordx4 {v(Kf,4)}, {v(vk)}, {s(rWS,4)}, {s(t4)} offen sc1")
        a(f"s_mov_b64 exec, {s(sC0,2)}")
        a(f"buffer_load_dwordx4 {v(V0,4)}, {v(vv)}, {s(rWS,4)}, {s(t4)} offen offset:1024 sc1")
        a(f"buffer_load_dwordx4 {v(V1,4)}, {v(vv)}, {s(rWS,4)}, {s(t4)} offen offset:1536 sc1")
        a("s_mov_b64 exec, -1\ns_waitcnt vmcnt(0)")
        a(f"v_mfma_f32_32x32x16_bf16 {v(S,16)}, {v(Kf,4)}, {v(Qf,4)}, 0\ns_nop 15")
        for i in range(16): a(f"v_sub_f32 {v(S+i)}, {v(S+i)}, {v(M)}")
        for i in range(16): a(f"v_exp_f32 {v(S+i)}, {v(S+i)}")
        a("s_nop 1")
        a(f"v_smfmac_f32_32x32x32_bf16 {v(T,16)}, {v(V0,4)}, {v(S,8)}, v1")
        a(f"v_smfmac_f32_32x32x32_bf16 {v(T,16)}, {v(V1,4)}, {v(S+8,8)}, v1")
        a(f"s_add_u32 {s(t4)}, {s(t4)}, 2048\ns_cmp_lt_u32 {s(t4)}, {KV+64*2048}\ns_cbranch_scc1 {l2}")
        a(f"s_nop 15\ns_branch {back}")

    a.label("L_B")
    a.reset(); cur["prio"] = 0
    vW, vTr, vXb, vL16, vL4, vG1, vX16 = 3, 12, 6, 10, 11, 13, 14
    ACC, WF, XB, TM = 16, 112, 160, 192
    vTr0 = 200
    sRING, sBLK, sOOB, sU, sXo, sM0 = 80, 81, 82, 83, 84, 85
    a(f"v_lshlrev_b32 {v(vL16)}, 4, v0\nv_lshlrev_b32 {v(vL4)}, 2, v0")
    a(f"s_cmp_lg_u32 {s(sW)}, 3\ns_cbranch_scc1 L_B0")
    srd(a, rW2, pGW, 1024)
    a(f"s_lshl_b32 {s(t2)}, {s(sROT)}, 7\nv_add_u32 v16, {s(t2)}, {v(vL16)}\nv_and_b32 v16, 0x3ff, v16\ns_mov_b32 m0, {GW_}\nv_mov_b32 v17, 0\nv_mov_b32 v18, -8")
    dma(16, rW2, "0")
    a(f"ds_write_b32 {v(vL4)}, v17 offset:{CA_}\nds_write_b32 {v(vL4)}, v18 offset:{CB_}")
    a.label("L_B0")
    a(f"s_lshl_b32 {s(sRING)}, {s(sW)}, 14\ns_add_u32 {s(sRING)}, {s(sRING)}, {RING_}")
    a(f"s_lshl_b32 {s(t0)}, {s(sCG)}, 2\ns_add_u32 {s(sU)}, {s(t0)}, {s(sW)}")
    a(f"s_cmp_gt_u32 {s(sU)}, 28\ns_cselect_b32 {s(t1)}, 0, {512*2752}\ns_cselect_b32 {s(t2)}, 0, {4*JS}")
    srd(a, rA, pW1, s(t1)); srd(a, rB, pW3, s(t1))
    a(f"s_mul_i32 {s(t0)}, {s(sTG)}, {4*JS}\ns_add_u32 {s(t0)}, {s(t0)}, {HBUF}")
    srd(a, rH, pWS, s(t2), off=s(t0))
    a.c("remaining x rows: wave j loads 16-token group (js+1+j)&3")
    a(f"s_add_u32 {s(t0)}, {s(sJS)}, {s(sW)}\ns_add_u32 {s(t0)}, {s(t0)}, 1\ns_and_b32 {s(t0)}, {s(t0)}, 3\ns_lshl_b32 {s(sM0)}, {s(t0)}, 11")
    a(f"s_xor_b32 {s(t0)}, {s(t0)}, {s(sJS)}\ns_lshl_b32 {s(t0)}, {s(t0)}, 14\nv_xor_b32 {v(vXs)}, {s(t0)}, {v(vXs)}\nv_xor_b32 {v(vXs+1)}, {s(t0)}, {v(vXs+1)}\ns_lshl_b32 {s(sXo)}, {s(sROT)}, 7")
    a(f"s_mul_i32 {s(t0)}, {s(sU)}, 96")
    for q in range(3):
        a(f"v_add_u32 v16, {64*q}, v0\nv_mul_u32_u24 v17, 10923, v16\nv_lshrrev_b32 v17, 16, v17\nv_mul_u32_u24 v18, 6, v17\nv_sub_u32 v18, v16, v18")
        a(f"v_mul_u32_u24 v17, 2752, v17\nv_lshl_add_u32 v17, v18, 4, v17\nv_add_u32 {v(vW+q)}, {s(t0)}, v17")
    a(f"s_mul_i32 {s(sBLK)}, {s(sROT)}, {64*2752}\ns_mul_i32 {s(t5)}, {s(sW)}, 3072")
    def w13_issue(base, off, part, soff, w3=W3OFF):
        r = rA if part < 3 else rB
        a(f"s_add_u32 m0, {s(base)}, {off + (part//3)*w3 + (part%3)*1024}\ns_nop 0")
        a(f"buffer_load_dwordx4 {v(vW + part%3)}, {s(r,4)}, {s(soff)} offen {NT('w')}lds")
    def blk_next():
        a(f"s_add_u32 {s(sBLK)}, {s(sBLK)}, {32*2752}\ns_cmp_eq_u32 {s(sBLK)}, {512*2752}\ns_cselect_b32 {s(sBLK)}, 0, {s(sBLK)}")
    def blk_issue(base, off, w3=W3OFF):
        for p in range(6): w13_issue(base, off, p, sBLK, w3)
        blk_next()
    a.c("w1 / w3 transpose-read address: grp*w3 + (8h+r)*96 + c*8")
    a(f"v_lshrrev_b32 v16, 5, v0\nv_lshlrev_b32 v16, 3, v16\nv_bfe_u32 v17, v0, 2, 2\nv_add_u32 v16, v16, v17\nv_mul_u32_u24 v16, 96, v16")
    a(f"v_and_b32 v17, 3, v0\nv_lshl_add_u32 v16, v17, 3, v16\nv_bfe_u32 v17, v0, 4, 1\nv_mul_u32_u24 v18, {W3OFF}, v17\nv_mul_u32_u24 v17, {W3OFF0}, v17")
    a(f"v_add3_u32 {v(vTr)}, v16, v18, {s(sRING)}\nv_add3_u32 {v(vTr0)}, v16, v17, {s(t5)}")
    x32_addr(vXb, 16, X_)
    x16_addr(vX16, 16)
    a(f"v_mov_b32 {v(TM)}, 0\nv_mov_b32 {v(TM+1)}, 0\ns_nop 1")
    for i in range(6): a(f"v_mfma_f32_32x32x8bf16_1k {v(ACC+16*i,16)}, {v(TM,2)}, {v(TM,2)}, 0")
    a(f"s_cmp_eq_u32 {s(sW)}, 3\ns_cbranch_scc1 L_Bp")
    a("s_waitcnt vmcnt(0) lgkmcnt(0)\ns_barrier")
    tag_from_epoch()
    for kb in range(8):
        for i in range(2):
            a(f"s_add_u32 m0, {s(sM0)}, {X_+kb*8192+i*1024}")
            a(f"s_and_b32 {s(sXo)}, {s(sXo)}, 0x3ff" if i == 0 else "s_nop 0")
            dma(vXs+i, rX, s(sXo))
        a(f"s_add_u32 {s(sXo)}, {s(sXo)}, 128")
    a("s_waitcnt vmcnt(8)")
    cyc(33+8)
    a("s_barrier")
    a("s_branch L_B1")

    a.label("L_Bp")
    a.c("wave 7: K (cg < 4) or V of this workgroup's 16-token group")
    pT, pX_, pA, KA, VA, F = 202, 204, 206, 208, 212, 112
    a.c("transpose-read address in a 32-byte-row image: ((8G+r) ^ (4*(G&1)))*32 + c*8")
    a(f"v_lshrrev_b32 v216, 4, v0\nv_lshlrev_b32 {v(pT)}, 8, v216\nv_and_b32 v216, 1, v216\nv_lshl_add_u32 {v(pT)}, v216, 7, {v(pT)}")
    a(f"v_and_b32 v216, 15, v0\nv_lshl_add_u32 {v(pT)}, v216, 3, {v(pT)}\nv_xor_b32 {v(pT+1)}, 128, {v(pT)}")
    a(f"s_add_u32 {s(t0)}, {s(sM0)}, {X_}\nv_add_u32 {v(pX_)}, {s(t0)}, {v(vX16)}\nv_xor_b32 {v(pX_+1)}, 64, {v(pX_)}")
    a(f"s_lshr_b32 {s(t1)}, {s(sCG)}, 2\ns_sub_u32 {s(t0)}, 9, {s(t1)}\nv_lshrrev_b32 v217, 5, v0\nv_lshlrev_b32 v217, {s(t0)}, v217\nv_lshl_add_u32 {v(pA)}, v216, 4, v217")
    a(f"s_lshl_b32 {s(t4)}, {s(sTG)}, 1\ns_lshr_b32 {s(t0)}, {s(sJS)}, 1\ns_add_u32 {s(t4)}, {s(t4)}, {s(t0)}\ns_lshl_b32 {s(t4)}, {s(t4)}, 1\ns_add_u32 {s(t4)}, {s(t4)}, {s(t1)}\ns_lshl_b32 {s(t4)}, {s(t4)}, 10")
    a(f"s_and_b32 {s(t0)}, {s(sJS)}, 1\ns_add_u32 {s(t1)}, {s(t1)}, 8\ns_lshl_b32 {s(t0)}, {s(t0)}, {s(t1)}\ns_add_u32 {s(t4)}, {s(t4)}, {s(t0)}\ns_add_u32 {s(t4)}, {s(t4)}, {KV}")
    a(f"s_lshl_b32 {s(t3)}, {s(sTG)}, 7\ns_lshl_b32 {s(t0)}, {s(sCG)}, 2\ns_add_u32 {s(t3)}, {s(t3)}, {s(t0)}\ns_add_u32 {s(t3)}, {s(t3)}, {FKV}")
    a(f"s_cmp_ge_u32 {s(sCG)}, 4\ns_cselect_b64 vcc, -1, 0")
    a("s_waitcnt vmcnt(0) lgkmcnt(0)\ns_barrier")
    a.reset()
    def kvp_read(ks):
        st = F + 8*(ks % 6)
        a.lds(f"ds_read_b128 {v(st,4)}, {v(pX_+(ks&1))} offset:{(ks>>1)*8192}", ("f", ks))
        for rd in range(2): a.lds(f"ds_read_b64_tr_b16 {v(st+4+2*rd,2)}, {v(pT+rd)} offset:{ks*1024}", ("f", ks))
    for ks in range(5): kvp_read(ks)
    tag_from_epoch()
    for ks in range(16):
        if ks + 5 < 16: kvp_read(ks + 5)
        st = F + 8*(ks % 6)
        a.wait(lg=("f", ks))
        a(f"v_mfma_f32_16x16x32_bf16 {v(KA,4)}, {v(st+4,4)}, {v(st,4)}, {v(KA,4) if ks else 0}")
        a(f"v_mfma_f32_16x16x32_bf16 {v(VA,4)}, {v(st,4)}, {v(st+4,4)}, {v(VA,4) if ks else 0}")
    a(f"v_mov_b32 v220, {s(sTAG)}\ns_nop 5")
    a(f"v_cvt_pk_bf16_f32 v216, {v(KA)}, {v(KA+1)}\nv_cvt_pk_bf16_f32 v217, {v(KA+2)}, {v(KA+3)}")
    a(f"v_cvt_pk_bf16_f32 v218, {v(VA)}, {v(VA+1)}\nv_cvt_pk_bf16_f32 v219, {v(VA+2)}, {v(VA+3)}")
    a("v_cndmask_b32 v216, v216, v218, vcc\nv_cndmask_b32 v217, v217, v219, vcc\nv_mov_b32 v218, v216\nv_mov_b32 v219, v217\ns_nop 0")
    a("v_permlane16_swap_b32 v216, v218\nv_permlane16_swap_b32 v217, v219\ns_mov_b32 exec_lo, 0xffff\ns_mov_b32 exec_hi, 0xffff")
    a(f"buffer_store_dwordx4 v[216:219], {v(pA)}, {s(rWS,4)}, {s(t4)} offen sc1")
    stamp(13)
    if not P.get("FLAG1"): a("s_barrier")
    a(f"s_mov_b64 exec, 1\ns_waitcnt vmcnt(0)\nbuffer_store_dword v220, {v(TM)}, {s(rWS,4)}, {s(t3)} offen sc1\ns_mov_b64 exec, -1")
    if P.get("FLAG1"): a("s_barrier")
    stamp(2)
    a.label("L_B1")
    a.reset()
    stamp(1)
    blk_issue(t5, 0, W3OFF0)
    a(f"s_lshl_b32 {s(t0)}, {s(sW)}, 11\ns_add_u32 {s(t0)}, {s(t0)}, {X_}\nv_add_u32 v1, {s(t0)}, {v(vX16)}\nv_xor_b32 v2, 64, v1\nv_and_b32 {v(vX16)}, 48, v0")
    a(f"s_cmp_eq_u32 {s(sW)}, 3\ns_cbranch_scc1 L_B2\ns_waitcnt vmcnt(6)")
    a.label("L_B2")
    a("s_barrier\ns_barrier")
    a.c("gate of this wave's 16 tokens")
    z = 208
    def g_read(ks):
        st = WF + 8*(ks % 6)
        a.lds(f"ds_read_b128 {v(st,4)}, {v(1+(ks&1))} offset:{(ks>>1)*8192}", ("g", ks))
        a.lds(f"ds_read_b128 {v(st+4,4)}, {v(vX16)} offset:{GW_+ks*64}", ("g", ks))
    for ks in range(5): g_read(ks)
    for ks in range(16):
        if ks + 5 < 16: g_read(ks + 5)
        st = WF + 8*(ks % 6)
        a.wait(lg=("g", ks))
        a(f"v_mfma_f32_16x16x32_bf16 {v(z,4)}, {v(st+4,4)}, {v(st,4)}, {v(z,4) if ks else 0}")
    def trs(st, addr, off):
        return [f"ds_read_b64_tr_b16 {v(WF+24*st+12*ks+4*u+2*rd,2)}, {v(addr)} offset:{off + ks*1536 + rd*384 + u*32}"
                for ks in range(2) for u in range(3) for rd in range(2)]
    def xrs(st, off):
        return [f"ds_read_b128 {v(XB+16*st+8*ks+4*t,4)}, {v(vXb+2*st+ks)} offset:{off + t*4096}" for ks in range(2) for t in range(2)]
    for x in xrs(0, 0): a(x)
    prio(2)
    a(f"s_lshl_b32 {s(t0)}, {s(sW)}, 6\nv_and_b32 v1, 15, v0\nv_lshl_add_u32 v1, v1, 2, {s(t0)}")
    a(f"v_cvt_pk_bf16_f32 {v(z)}, {v(z)}, {v(z)}\nv_and_b32 {v(z)}, 0xffff0000, {v(z)}")
    a(f"v_mul_f32 {v(z)}, {f32(-LOG2E)}, {v(z)}\nv_exp_f32 {v(z)}, {v(z)}\ns_nop 0\nv_add_f32 {v(z)}, 1.0, {v(z)}\nv_rcp_f32 {v(z)}, {v(z)}\ns_nop 0")
    a(f"v_cvt_pk_bf16_f32 {v(z)}, {v(z)}, {v(z)}\nv_and_b32 {v(z)}, 0xffff0000, {v(z)}\nv_sub_f32 {v(vG1)}, 1.0, {v(z)}")
    a(f"v_cvt_pk_bf16_f32 {v(vG1)}, {v(vG1)}, {v(vG1)}\nv_and_b32 {v(vG1)}, 0xffff0000, {v(vG1)}")
    a(f"ds_write_b32 v1, {v(z)} offset:{G_}")
    prio(0)
    a(f"s_cmp_gt_u32 {s(sU)}, 28\ns_cbranch_scc1 L_Bh")
    blk_issue(sRING, SLOTOFF[1])
    a("s_waitcnt vmcnt(6)")
    for x in trs(0, vTr0, 0): a(x)
    a(f"s_mov_b32 {s(t0)}, 8\ns_mov_b32 {s(sOOB)}, {s(sBLK)}\ns_waitcnt lgkmcnt(0)")
    cyc(40)
    a(".p2align 3")
    a.label("L_ffn1")
    for st in range(2):
        M = [f"v_mfma_f32_32x32x16_bf16 {v(ACC+16*(2*u+t),16)}, {v(WF+24*st+12*ks+4*u,4)}, {v(XB+16*st+8*ks+4*t,4)}, {v(ACC+16*(2*u+t),16)}"
             for ks in range(2) for u in range(3) for t in range(2)]
        T = trs(st ^ 1, vTr, SLOTOFF[st ^ 1]); XR = xrs(st ^ 1, 8192 if st else 0)
        for k in range(3):
            a(M[k]); w13_issue(sRING, SLOTOFF[st], 2*k, sOOB); w13_issue(sRING, SLOTOFF[st], 2*k+1, sOOB)
        for x in XR: a(x)
        a(M[3]); a("s_waitcnt vmcnt(6)")
        for k in range(4):
            for x in T[3*k:3*k+3]: a(x)
            a(M[4+k])
        blk_next()
        if st == 1: a(f"s_sub_u32 {s(t0)}, {s(t0)}, 1")
        a(f"s_cmp_gt_u32 {s(t0)}, 1\ns_cselect_b32 {s(sOOB)}, {s(sBLK)}, 0x7ff00000")
        a(M[8])
        if st == 1:
            a("s_setprio 2")
            for j in range(4): a(f"v_add_u32 {v(vXb+j)}, 0x2000, {v(vXb+j)}")
            a("s_setprio 0")
        a(M[9]); a(M[10]); a(M[11])
        a("s_waitcnt lgkmcnt(0)")
    if P["STAMP"]:
        a(f"s_memtime s[100:101]\ns_add_u32 m0, {s(t0)}, 32\ns_setprio 2\ns_waitcnt lgkmcnt(0)\nv_writelane_b32 v{VST}, s100, m0\ns_setprio 0")
    a(f"s_cmp_lg_u32 {s(t0)}, 0\ns_cbranch_scc1 L_ffn1")
    stamp(3)
    a.label("L_Bh")
    a.reset()
    a.c("---- SwiGLU epilogue, publish h; prefetch [w2; wo] column slice into the shared ring")
    vD2, vONE, vHs, vOB, vZ, vT2 = 1, 2, 3, 4, 5, 120
    sWg, sHg, sOB = 84, 86, 87
    prio(2)
    a(f"v_mov_b32 {v(vONE)}, 1\ns_waitcnt vmcnt(0)\nds_add_u32 {v(vL4)}, {v(vONE)} offset:{CB_}")
    srd(a, rW2, pW2, 1376*1024); srd(a, rWO, pWO, 512*1024)
    a(f"v_and_b32 v14, 15, v0\nv_lshlrev_b32 {v(TM)}, 4, v14\nv_lshrrev_b32 {v(TM+1)}, 5, v0\nv_lshl_add_u32 {v(TM)}, {v(TM+1)}, 8, {v(TM)}\nv_bfe_u32 {v(TM+1)}, v0, 4, 1")
    a(f"v_lshl_add_u32 {v(vOB)}, {v(TM+1)}, 14, {v(TM)}\nv_mul_u32_u24 {v(TM+1)}, {JS}, {v(TM+1)}\nv_add_u32 {v(vHs)}, {v(TM+1)}, {v(TM)}")
    obuf_soff(sOB)
    a.c("clear the partner wave's two o tiles to the not-yet-written sentinel")
    a("v_mov_b32 v6, -1\nv_mov_b32 v7, -1\nv_mov_b32 v8, -1\nv_mov_b32 v9, -1")
    a.vmem(f"buffer_store_dwordx4 v[6:9], {v(vOB)}, {s(rWS,4)}, {s(sOB)} offen {XM}", "st")
    a.vmem(f"buffer_store_dwordx4 v[6:9], {v(vOB)}, {s(rWS,4)}, {s(sOB)} offen offset:1024 {XM}", "st")
    a.c("[w2; wo] source: 128-byte rows, slot holds chunk slot ^ (row & 6)")
    a(f"v_lshrrev_b32 {v(TM)}, 3, v0\nv_and_b32 {v(TM+1)}, 6, {v(TM)}\nv_and_b32 {v(TM+2)}, 7, v0\nv_xor_b32 {v(TM+1)}, {v(TM+1)}, {v(TM+2)}\nv_lshlrev_b32 {v(TM+1)}, 4, {v(TM+1)}\nv_lshl_add_u32 {v(TM)}, {v(TM)}, 10, {v(TM+1)}")
    a(f"s_lshl_b32 {s(t0)}, {s(sW)}, 6\ns_add_u32 {s(t0)}, {s(t0)}, {s(sCG)}\ns_lshl_b32 {s(t0)}, {s(t0)}, 7\nv_add_u32 {v(vD2)}, {s(t0)}, {v(TM)}")
    a(f"s_mul_i32 {s(t0)}, {s(sROT)}, 11\ns_lshr_b32 {s(t0)}, {s(t0)}, 3\ns_lshl_b32 {s(sWg)}, {s(t0)}, 17\ns_lshl_b32 {s(sHg)}, {s(t0)}, 12")
    a(f"s_lshl_b32 {s(sM0)}, {s(sW)}, 10\ns_add_u32 {s(sM0)}, {s(sM0)}, {SB_}")
    a(f"s_mov_b32 {s(sC0)}, {f32(-LOG2E)}\ns_mov_b32 {s(sC0+1)}, {s(sC0)}\ns_mov_b32 {s(sC0+2)}, 1.0\ns_mov_b32 {s(sC0+3)}, 1.0")
    a(f"s_mul_i32 {s(t4)}, {s(sU)}, {3*512}\ns_add_u32 {s(t5)}, {s(t4)}, {2*JS}")
    NSL = 26
    wn = [0]
    def w_issue():
        st = wn[0]; wn[0] += 1
        a(f"s_add_u32 m0, {s(sM0)}, {(st % NSL)*4096}")
        if st < 44:
            a(f"s_add_u32 {s(t0)}, {s(sWg)}, {(st & 3)*32768}")
            dma(vD2, rW2, s(t0), ("w", st), pol=NT("2"))
            if st & 3 == 3: a(f"s_add_u32 {s(sWg)}, {s(sWg)}, 0x20000\ns_cmp_eq_u32 {s(sWg)}, {11<<17}\ns_cselect_b32 {s(sWg)}, 0, {s(sWg)}")
        else:
            r, ci = (st - 44) >> 3, (st - 44) & 7
            a(f"s_mov_b32 {s(t0)}, {(2*ci+r)*32768}")
            dma(vD2, rWO, s(t0), ("w", st), pol=NT("2"))
    NPF = P.get("NPF", 4)
    for u in range(3):
        for t in range(2):
            A_ = ACC + 16*(2*u+t)
            for i in range(0, 8, 2): a(f"v_pk_mul_f32 {v(TM+i,2)}, {v(A_+i,2)}, {s(sC0,2)}")
            for i in range(8): a(f"v_exp_f32 {v(TM+i)}, {v(TM+i)}")
            for i in range(0, 8, 2): a(f"v_pk_mul_f32 {v(A_+i,2)}, {v(A_+i,2)}, {v(A_+8+i,2)}")
            for i in range(0, 8, 2): a(f"v_pk_add_f32 {v(TM+i,2)}, {v(TM+i,2)}, {s(sC0+2,2)}")
            for i in range(8): a(f"v_rcp_f32 {v(TM+i)}, {v(TM+i)}")
            for i in range(0, 8, 2): a(f"v_pk_mul_f32 {v(A_+i,2)}, {v(A_+i,2)}, {v(TM+i,2)}")
            for i in range(4): a(f"v_cvt_pk_bf16_f32 {v(A_+8+i)}, {v(A_+2*i)}, {v(A_+2*i+1)}")
            a.vmem(f"buffer_store_dwordx4 {v(A_+8,4)}, {v(vHs)}, {s(rH,4)}, {s(t4+t)} offen offset:{u*512} {XM}", "st")
            if u == 0 and t == 0:
                lds_wait(vL4, CA_, 8, TM, 1); lds_wait(vL4, CB_, -4, TM, 1)
            if u < 2:
                for _ in range(NPF): w_issue()
    stamp(4)
    a.c("transpose-read: row 16*(kg>>1) + 4*(kg&1) + r, chunk (2a ^ (row&6)) + (c>>1), sub c&1")
    a(f"v_lshrrev_b32 {v(TM)}, 5, v0\nv_bfe_u32 {v(TM+1)}, v0, 2, 3\nv_lshl_add_u32 {v(TM)}, {v(TM)}, 4, {v(TM+1)}\nv_lshlrev_b32 {v(TM)}, 7, {v(TM)}")
    a(f"v_and_b32 {v(TM+1)}, 6, {v(TM+1)}\nv_lshl_add_u32 {v(TM)}, {v(TM+1)}, 4, {v(TM)}\nv_and_b32 {v(TM+1)}, 3, v0\nv_lshl_add_u32 {v(TM)}, {v(TM+1)}, 3, {v(TM)}\nv_add_u32 {v(vT2)}, {SB_}, {v(TM)}")
    for ac in range(1, 4): a(f"v_xor_b32 {v(vT2+ac)}, {32*ac}, {v(vT2)}")
    for ac in range(4): a(f"v_add_u32 {v(vT2+4+ac)}, 0x10000, {v(vT2+ac)}")
    a(f"v_mov_b32 {v(vZ)}, 0\nv_mov_b32 v12, {s(sTAG)}")
    a(f"v_bfe_u32 v3, v0, 2, 3\nv_and_b32 {v(TM)}, 3, v0\nv_lshlrev_b32 {v(TM)}, 2, {v(TM)}\nv_lshl_add_u32 v3, v3, 7, {v(TM)}")
    a(f"s_lshl_b32 {s(t0)}, {s(sTG)}, 10\ns_add_u32 {s(t3)}, {s(t0)}, {FH}\ns_lshl_b32 {s(t0)}, {s(sCG)}, 7\ns_lshl_b32 {s(t1)}, {s(sW)}, 2\ns_add_u32 {s(t0)}, {s(t0)}, {s(t1)}\ns_add_u32 {s(t2)}, {s(t0)}, {s(t3)}")
    a(f"s_lshl_b32 {s(t0)}, {s(sTG)}, 2\ns_add_u32 {s(t0)}, {s(t0)}, {s(sW)}\ns_mul_i32 {s(t0)}, {s(t0)}, {JS}\ns_add_u32 {s(t0)}, {s(t0)}, {HBUF}")
    srd(a, rH, pWS, 43*1024, off=s(t0))
    a.wait(vm="st")
    a(f"s_mov_b64 exec, 1\nbuffer_store_dword v12, {v(vZ)}, {s(rWS,4)}, {s(t2)} offen {XM}")
    a.c("every workgroup has published K / V under this launch's tag, so all have read the old epoch: hand it over")
    a(f"s_or_b32 {s(t0)}, s2, {s(sW)}\ns_cbranch_scc1 L_B4\nbuffer_store_dword v12, {v(vZ)}, {s(rWS,4)}, 0 offen sc1")
    a.label("L_B4")
    a("s_mov_b64 exec, -1")
    stamp(5)
    prio(0)
    while wn[0] < NSL:
        w_issue(); a(f"s_waitcnt vmcnt({P.get('THR', 5)})")
    a(f"s_waitcnt vmcnt(0)\nds_add_u32 {v(vL4)}, {v(vONE)} offset:{CB_}")
    prio(2)
    spin_init(); a.label("L_hpoll")
    a(f"buffer_load_dword {v(TM)}, v3, {s(rWS,4)}, {s(t3)} offen sc1\ns_waitcnt vmcnt(0)")
    a(f"v_cmp_ne_u32 vcc, {s(sTAG)}, {v(TM)}")
    spin_back("L_hpoll", P.get("HSLEEP", 2))
    a.reset()
    stamp(6)
    AO, WB, HF, DH, RT, vC = 16, 32, 128, P.get('DH', 16), 64, 6
    OF, WOF = 72, 128
    def h_issue(st):
        a.vmem(f"buffer_load_dwordx4 {v(HF+4*(st%DH),4)}, {v(vL16)}, {s(rH,4)}, {s(sHg)} offen offset:{(st&3)*1024} sc1", ("h", st))
        if st & 3 == 3: a(f"s_add_u32 {s(sHg)}, {s(sHg)}, 4096\ns_cmp_eq_u32 {s(sHg)}, {11<<12}\ns_cselect_b32 {s(sHg)}, 0, {s(sHg)}")
    def w_pull(st, dst, tag):
        sl = st % NSL
        for ac in range(4):
            for rd in range(2):
                a.lds(f"ds_read_b64_tr_b16 {v(dst+4*ac+2*rd,2)}, {v(vT2+4*(sl>>4)+ac)} offset:{(sl&15)*4096+rd*1024}", tag)
    prio(0)
    for st in range(DH): h_issue(st)
    prio(2)
    lds_wait(vL4, CB_, 0, vC, 1)
    prio(P.get("PF2", 0))
    w_pull(0, WB, ("t", 0))
    adds = {8: None, 17: 34, 25: 43, 34: 51}
    upto = {8: 35, 17: 44, 25: 52, 34: 60}
    thr = 0; allowed = NSL
    for st in range(44):
        if st + 1 < 44: w_pull(st + 1, WB + 16*((st+1) & 1), ("t", st + 1))
        if st + 1 in adds:
            if adds[st+1]: a.wait(vm=("w", adds[st+1]))
            a.lds(f"ds_add_u32 {v(vL4)}, {v(vONE)} offset:{CB_}"); thr += 4
        if st in adds: a.lds(f"ds_read_b32 {v(vC)}, {v(vL4)} offset:{CB_}", "c")
        a.wait(vm=("h", st), lg=("t", st))
        for ac in range(4):
            a(f"v_mfma_f32_16x16x32_bf16 {v(AO+4*ac,4)}, {v(WB+16*(st&1)+4*ac,4)}, {v(HF+4*(st%DH),4)}, {v(AO+4*ac,4) if st else 0}")
        if st + DH < 44: h_issue(st + DH)
        if P.get("STAMP2") and st % 4 == 0 and st < 40: a(f"s_memtime s[{4+st//2}:{5+st//2}]")
        if st in adds:
            l0, l1 = a.newlabel("L_cs"), a.newlabel("L_cg")
            a("s_setprio 2"); a.wait(lg="c")
            a(f"v_cmp_gt_i32 vcc, {thr}, {v(vC)}\ns_cbranch_vccnz {l0}"); a.label(l1); a(f"s_setprio {P.get('PF2', 0)}")
            tail.append((l0, l1, thr)); allowed = upto[st]
        for _ in range(2):
            if wn[0] < allowed: w_issue()
    assert wn[0] == 60
    if P.get("STAMP2"):
        a("s_mov_b32 s91, s25\ns_mov_b32 s90, s24") if False else None
        a("s_setprio 3\ns_waitcnt lgkmcnt(0)")
        for k in range(10): a(f"v_writelane_b32 v{VST}, s{4+2*k}, {48+k}")
    stamp(7)
    for ci in range(8): w_pull(44 + ci, WOF + 16*ci, None)
    prio(2)
    a(f"v_mov_b32 v8, {v(vG1)}")
    for i in range(0, 16, 2): a(f"v_pk_mul_f32 {v(AO+i,2)}, {v(AO+i,2)}, v[8:9] op_sel_hi:[1,0]")
    a.wait_all(lg=False)
    a(f"ds_add_u32 {v(vL4)}, {v(vONE)} offset:{CB_}"); thr += 4
    sOr = 84
    a(f"s_lshl_b32 {s(t0)}, {s(sTG)}, 16\ns_lshl_b32 {s(t1)}, {s(sW)}, 14\ns_add_u32 {s(t0)}, {s(t0)}, {s(t1)}")
    for i in range(4): a(f"s_add_u32 {s(sOr+i)}, {s(t0)}, {OBUF + i*4096}")
    a(f"s_lshl_b32 {s(t1)}, {s(sCG)}, 7\ns_add_u32 {s(t4)}, {s(t0)}, {s(t1)}")
    srd(a, rOUT, pOUT, 2048*1024)
    a(f"v_lshrrev_b32 v7, 5, v0\nv_lshlrev_b32 v7, 4, v7\nv_lshl_add_u32 v7, v14, 10, v7\nv_and_b32 v8, 16, v0\nv_lshl_add_u32 v7, v8, 1, v7")
    a(f"s_mul_i32 {s(t0)}, {s(sW)}, 768\nv_add_u32 v14, {s(t0)}, {v(vL4)}")
    stamp(8)
    a.c("wait until the partner A wave is past its first o tile")
    spin_init(); a.label("L_r1wait")
    a(f"ds_read_b32 {v(vC)}, v14 offset:{L_+12*256}\ns_waitcnt lgkmcnt(0)\nv_cmp_eq_u32 vcc, -1, {v(vC)}")
    spin_back("L_r1wait", 2)
    stamp(9)
    def o_round(r, sleep):
        lbl = f"L_opoll{r}"
        spin_init(); a.label(lbl)
        for ci in range(8):
            a(f"buffer_load_dwordx4 {v(OF+4*ci,4)}, {v(vL16)}, {s(rWS,4)}, {s(sOr+ci//2)} offen offset:{(ci&1)*2048+r*1024} sc1")
        a("s_waitcnt vmcnt(5)")
        a(f"v_max3_u32 {v(vC)}, {v(OF)}, {v(OF+4)}, {v(OF+8)}\ns_waitcnt vmcnt(3)\nv_max3_u32 {v(vC)}, {v(vC)}, {v(OF+12)}, {v(OF+16)}")
        a(f"s_waitcnt vmcnt(1)\nv_max3_u32 {v(vC)}, {v(vC)}, {v(OF+20)}, {v(OF+24)}\ns_waitcnt vmcnt(0) lgkmcnt(0)\nv_max_u32 {v(vC)}, {v(vC)}, {v(OF+28)}")
        a(f"v_cmp_eq_u32 vcc, -1, {v(vC)}")
        spin_back(lbl, sleep)
        if r == 0: prio(0)
        for ci in range(8):
            for ac in range(4):
                a(f"v_mfma_f32_16x16x32_bf16 {v(AO+4*ac,4)}, {v(WOF+16*ci+4*ac,4)}, {v(OF+4*ci,4)}, {v(AO+4*ac,4)}")
    o_round(0, 4)
    stamp(10)
    prio(2)
    lds_wait(vL4, CB_, thr, vC, 1)
    for ci in range(8): w_pull(52 + ci, WOF + 16*ci, None)
    a("s_barrier")
    stamp(11)
    o_round(1, None)
    a("s_nop 4")
    for i in range(8): a(f"v_cvt_pk_bf16_f32 {v(RT+i)}, {v(AO+2*i)}, {v(AO+2*i+1)}")
    for h in range(2):
        a(f"v_permlane16_swap_b32 {v(RT+4*h)}, {v(RT+4*h+2)}\nv_permlane16_swap_b32 {v(RT+4*h+1)}, {v(RT+4*h+3)}")
        a(f"buffer_store_dwordx4 {v(RT+4*h,4)}, v7, {s(rOUT,4)}, {s(t4)} offen offset:{64*h} {P.get('OUTMOD','')}")
    stamp(12); stamp_out()
    if P.get("DIAG"):
        a(f"s_waitcnt lgkmcnt(0)\ns_sub_u32 s94, s94, s92\ns_mul_i32 s94, s94, {P.get('DIAGK',0)}\ns_add_u32 s94, s94, {P['DIAG']}")
        a("L_diag:\ns_memrealtime s[90:91]\ns_waitcnt lgkmcnt(0)\ns_sub_u32 s90, s90, s92\ns_cmp_lt_u32 s90, s94\ns_cbranch_scc1 L_diag")
    a.label("L_end")
    a.label("L_last")
    a("s_endpgm")
    for l0, l1, th in tail:
        a.label(l0); lds_wait(vL4, CB_, th, vC, 1); a(f"s_branch {l1}")
    for r in range(2): slow_path(f"L_slow{r}", f"L_back{r}", O + 64*r + 48, QF + 16*r + 12, O + 64*r)

    ref = open("cdna_kernels/" + NAME + ".s.ref").read().split("\n")
    head = [l for l in ref if l.startswith(";") and "@launch" not in l and "Override" not in l and "grid=ceil" not in l]
    out = "\n".join(head) + f"\n; @launch grid=(256,1,1) block=(512,1,1) lds={LDS_BYTES}\n"
    out += f""".amdgcn_target "amdgcn-amd-amdhsa--gfx950"
.text
.globl {NAME}_kernel
.p2align 8
.type {NAME}_kernel,@function
{NAME}_kernel:
"""
    out += a.text()
    out += f""".section .rodata,"a"
.p2align 6
.amdhsa_kernel {NAME}_kernel
  .amdhsa_next_free_vgpr 256
  .amdhsa_next_free_sgpr 102
  .amdhsa_accum_offset 256
  .amdhsa_group_segment_fixed_size 0
  .amdhsa_kernarg_size 104
  .amdhsa_user_sgpr_count 2
  .amdhsa_user_sgpr_kernarg_segment_ptr 1
  .amdhsa_system_sgpr_workgroup_id_x 1
  .amdhsa_float_denorm_mode_32 3
.end_amdhsa_kernel
"""
    errs = check_hazards(a.text())
    for e in errs: print("HAZARD need %d have %d:\n   %d: %s\n   %d: %s" % (e[2], e[3], e[0], e[4], e[1], e[5]), file=sys.stderr)
    return out, errs

if __name__ == "__main__":
    kw = {}
    path = "cdna_kernels/" + NAME + ".s"
    for arg in sys.argv[1:]:
        if "=" in arg:
            k, val = arg.split("=", 1)
            kw[k] = int(val) if val.lstrip("-").isdigit() else val
        else: path = arg
    out, errs = gen(**kw)
    open(path, "w").write(out)
    print("wrote", path, len(out.split("\n")), "lines;", len(errs), "hazards")
```

```python
import sys, struct, math
from asmlib import Asm, v, s, check_hazards

NAME = "gated_mix__grouped_kv_mqa__glu_gated_swiglu__prompt"
def f32(x): return "0x%08x" % struct.unpack("<I", struct.pack("<f", x))[0]
LOG2E = math.log2(math.e)

DEFAULT = dict(GATE2=0, NPF=1, DH=8, FLAG1=1, ROTM=6, STAMP=0, MAP="4x2", FORCE_SLOW=0, LO=-40, HI=60, SPIN=200000, CPF=1, TLB=1, TLBN=32, TLBL="0x48c9a761")

O1_, L_, GW_, G_, CA_, CB_, X_, RING_ = 0, 24832, 30976, 32000, 32256, 32512, 32768, 98304
O2_, SB_ = X_, X_ + 24576
QG = 7168
LDS_BYTES = 163840
W3OFF, W3OFF0 = 3200, 12416
SLOTOFF = (8192, 0)
FKV, FH, KV, OBUF, HBUF, STAMPS = 0x1000, 0x2000, 0x10000, 0x40000, 0x240000, 0xA00000
JS = 44*1024
WS_BYTES = 0xB00000
IDX = 0xDDDDDDDD
pX, pWQ, pWK, pWV, pWO, pW1, pW3, pW2, pGW, pOUT, pDBG, pWS = 4, 6, 8, 10, 12, 16, 18, 20, 22, 24, 26, 28
sTAG, sSPIN = 30, 31
rX, rA, rB, rWS, rH, rW2, rWO, rOUT, rDBG = 32, 36, 40, 44, 48, 52, 56, 60, 64
sTG, sCG, sROT, sW, sWV = 68, 69, 70, 71, 72
t0, t1, t2, t3, t4, t5, sJS = 73, 74, 75, 76, 77, 78, 79
sC0 = 96
VST = 15

def srd(a, r, p, nbytes, off=None):
    if off is None:
        a(f"s_mov_b32 {s(r)}, {s(p)}\ns_mov_b32 {s(r+1)}, {s(p+1)}")
    else:
        a(f"s_add_u32 {s(r)}, {s(p)}, {off}\ns_addc_u32 {s(r+1)}, {s(p+1)}, 0")
    a(f"s_mov_b32 {s(r+2)}, {nbytes}\ns_mov_b32 {s(r+3)}, 0x20000")

def gen(**kw):
    P = dict(DEFAULT); P.update(kw)
    a = Asm()
    cur = {"prio": 0}
    XM = "" if P.get("LOCAL") else "sc1"
    tail = []
    def prio(p): cur["prio"] = p; a(f"s_setprio {p}")
    def stamp(k):
        if P.get("DIAG") and k == P.get("DIAGM", 0):
            a("s_memrealtime s[94:95]"); a.wait_all(vm=False)
        if P["STAMP"]:
            a("s_memrealtime s[100:101]\ns_memtime s[14:15]\ns_setprio 3"); a.wait_all(vm=False)
            a(f"v_writelane_b32 v{VST}, s100, {k}\nv_writelane_b32 v{VST}, s14, {k+16}\ns_setprio {cur['prio']}")
    def cyc(k):
        if P["STAMP"]:
            a("s_memtime s[100:101]\ns_setprio 3"); a.wait_all(vm=False)
            a(f"v_writelane_b32 v{VST}, s100, {k}\ns_setprio {cur['prio']}")
    def stamp_out():
        if P["STAMP"]:
            cyc(15)
            a(f"s_lshl_b32 {s(t0)}, s2, 3\ns_add_u32 {s(t0)}, {s(t0)}, {s(sWV)}\ns_lshl_b32 {s(t0)}, {s(t0)}, 8\ns_add_u32 {s(t0)}, {s(t0)}, {STAMPS}")
            a(f"v_lshlrev_b32 v8, 2, v0\nbuffer_store_dword v{VST}, v8, {s(rWS,4)}, {s(t0)} offen")
    def dma(voff, r, soff, tag=None, mod="", pol=""):
        a.vmem(f"buffer_load_dwordx4 {v(voff)}, {s(r,4)}, {soff} offen {mod}{pol}lds", tag)
    NT = lambda k: "nt " if k in P.get("NT", "") else ""
    def spin_init(): a(f"s_mov_b32 {s(sSPIN)}, {P['SPIN']}")
    def spin_back(lbl, sleep=None):
        out = a.newlabel("L_ok")
        a(f"s_cbranch_vccz {out}")
        if sleep: a(f"s_sleep {sleep}")
        a(f"s_sub_u32 {s(sSPIN)}, {s(sSPIN)}, 1\ns_cmp_lg_u32 {s(sSPIN)}, 0\ns_cbranch_scc1 {lbl}")
        a.label(out)
    def lds_wait(addr, off, count, tmp, sleep=None):
        lbl = a.newlabel("L_lw"); spin_init(); a.label(lbl)
        a(f"ds_read_b32 {v(tmp)}, {v(addr)} offset:{off}"); a.wait_all(vm=False)
        a(f"v_cmp_gt_i32 vcc, {count}, {v(tmp)}")
        spin_back(lbl, sleep)
    def tag_from_epoch():
        a(f"s_mul_i32 {s(sTAG)}, {s(sTAG)}, 0x9E3779B1\ns_add_u32 {s(sTAG)}, {s(sTAG)}, 0x7F4A7C15")
    def x16_addr(dst, tmp):
        a.c("x fragment address (16x16x32 operand): n*128 + ((G ^ (n>>1))*16)")
        a(f"v_and_b32 {v(tmp)}, 15, v0\nv_lshrrev_b32 {v(dst)}, 1, {v(tmp)}\nv_lshrrev_b32 {v(tmp+1)}, 4, v0\nv_xor_b32 {v(dst)}, {v(dst)}, {v(tmp+1)}")
        a(f"v_lshlrev_b32 {v(dst)}, 4, {v(dst)}\nv_lshl_add_u32 {v(dst)}, {v(tmp)}, 7, {v(dst)}")
    def x32_addr(dst, tmp, base):
        a.c("x fragment address (32x32x16 operand), four k-steps of a 64-wide block")
        a(f"v_and_b32 {v(dst)}, 31, v0\nv_bfe_u32 {v(tmp)}, v0, 1, 3\nv_lshrrev_b32 {v(tmp+1)}, 5, v0\nv_xor_b32 {v(tmp)}, {v(tmp)}, {v(tmp+1)}")
        a(f"v_lshlrev_b32 {v(tmp)}, 4, {v(tmp)}\nv_lshl_add_u32 {v(dst)}, {v(dst)}, 7, {v(tmp)}\nv_add_u32 {v(dst)}, {base}, {v(dst)}")
        for j in range(1, 4): a(f"v_xor_b32 {v(dst+j)}, {32*j}, {v(dst)}")
    def obuf_soff(dst):
        a.c("o tile address: OBUF + tg*64K + w*16K + 2cg*1K")
        a(f"s_lshl_b32 {s(dst)}, {s(sTG)}, 2\ns_add_u32 {s(dst)}, {s(dst)}, {s(sW)}\ns_lshl_b32 {s(dst)}, {s(dst)}, 3\ns_add_u32 {s(dst)}, {s(dst)}, {s(sCG)}\ns_lshl_b32 {s(dst)}, {s(dst)}, 11\ns_add_u32 {s(dst)}, {s(dst)}, {OBUF}")

    if P.get("DIAG"): a("s_memrealtime s[92:93]\ns_memrealtime s[94:95]")
    a("s_cmp_ge_u32 s2, 256\ns_cbranch_scc1 L_end")
    a("s_load_dwordx16 s[4:19], s[0:1], 0\ns_load_dwordx8 s[20:27], s[0:1], 64\ns_load_dwordx2 s[28:29], s[0:1], 96")
    a("v_lshrrev_b32 v1, 6, v0")
    if P["CPF"]:
        a.c("pull this kernel's code into L2 (read only): one line per wave")
        a(f"s_getpc_b64 {s(t1,2)}\ns_lshr_b32 {s(t0)}, s2, 3\ns_lshl_b32 {s(t0)}, {s(t0)}, 10")
        a(f"v_lshl_add_u32 v16, v1, 7, {s(t0)}\nv_min_u32 v16, L_last-{NAME}_kernel-64, v16")
        a(f"v_mov_b32 v17, {s(t2)}\nv_add_co_u32 v16, vcc, {s(t1)}, v16\ns_nop 1\nv_addc_co_u32 v17, vcc, 0, v17, vcc")
        a("global_load_dword v127, v[16:17], off")
    a(f"v_and_b32 v0, 63, v0\nv_readfirstlane_b32 {s(sWV)}, v1")
    if P["MAP"] == "tok":
        a(f"s_and_b32 {s(sTG)}, s2, 31\ns_lshr_b32 {s(sCG)}, s2, 5")
        a(f"s_lshr_b32 {s(t0)}, {s(sTG)}, 3\ns_lshl_b32 {s(t0)}, {s(t0)}, 1\ns_add_u32 {s(sROT)}, {s(t0)}, {s(sTG)}\ns_add_u32 {s(sROT)}, {s(sROT)}, {s(sCG)}")
    elif P["MAP"] == "col":
        a(f"s_and_b32 {s(sCG)}, s2, 7\ns_lshr_b32 {s(sTG)}, s2, 3\ns_add_u32 {s(sROT)}, {s(sTG)}, {s(sCG)}")
    elif P["MAP"] == "4x2":
        a(f"s_lshr_b32 {s(t0)}, s2, 6\ns_and_b32 {s(t1)}, s2, 4\ns_add_u32 {s(sCG)}, {s(t0)}, {s(t1)}")
        a(f"s_bfe_u32 {s(t2)}, s2, 0x30003\ns_lshl_b32 {s(t0)}, {s(t0)}, 1\ns_add_u32 {s(sROT)}, {s(t0)}, {s(t2)}")
        a(f"s_lshl_b32 {s(t0)}, {s(t2)}, 2\ns_and_b32 {s(t1)}, s2, 3\ns_add_u32 {s(sTG)}, {s(t0)}, {s(t1)}")
    elif P["MAP"] == "2x4":
        a(f"s_lshr_b32 {s(t0)}, s2, 7\ns_and_b32 {s(t1)}, s2, 6\ns_add_u32 {s(sCG)}, {s(t0)}, {s(t1)}")
        a(f"s_bfe_u32 {s(t2)}, s2, 0x40003\ns_lshl_b32 {s(t0)}, {s(t0)}, 2\ns_add_u32 {s(sROT)}, {s(t0)}, {s(t2)}\ns_lshr_b32 {s(t1)}, {s(sCG)}, 1\ns_add_u32 {s(sROT)}, {s(sROT)}, {s(t1)}")
        a(f"s_lshl_b32 {s(t0)}, {s(t2)}, 1\ns_and_b32 {s(t1)}, s2, 1\ns_add_u32 {s(sTG)}, {s(t0)}, {s(t1)}")
    if P["TLB"]:
        a(f"s_lshl_b32 {s(t0)}, {s(sWV)}, 2\ns_lshr_b32 {s(t0)}, {P['TLBL']}, {s(t0)}\ns_and_b32 {s(t0)}, {s(t0)}, 15\ns_lshl_b32 {s(t0)}, {s(t0)}, 3\ns_load_dwordx2 s[90:91], s[0:1], {s(t0)}")
    a(f"s_and_b32 {s(sROT)}, {s(sROT)}, {P.get('ROTM', 7)}\ns_and_b32 {s(sW)}, {s(sWV)}, 3\ns_and_b32 {s(sJS)}, {s(sCG)}, 3")
    vXs, vKs = 1, 3
    a.c("x tile source: row lane>>3, slot lane&7 holds chunk slot ^ ((token>>1)&7)")
    a("v_lshrrev_b32 v4, 3, v0\nv_and_b32 v5, 7, v0\nv_lshrrev_b32 v6, 4, v0\nv_xor_b32 v5, v5, v6\nv_lshlrev_b32 v5, 4, v5\nv_lshl_add_u32 v4, v4, 10, v5")
    a(f"s_lshl_b32 {s(t0)}, {s(sTG)}, 2\ns_add_u32 {s(t0)}, {s(t0)}, {s(sJS)}\ns_lshl_b32 {s(t0)}, {s(t0)}, 14\nv_add_u32 {v(vXs)}, {s(t0)}, v4\nv_xor_b32 {v(vXs+1)}, 0x2040, {v(vXs)}")
    a.c("32-byte-row source: slot rho=lane>>1 holds row rho ^ (4*((rho>>3)&1))")
    a(f"v_lshrrev_b32 v5, 1, v0\nv_and_b32 v5, 8, v5\nv_xor_b32 v5, v5, v0\nv_lshlrev_b32 {v(vKs)}, 4, v5")
    a(f"s_add_u32 {s(t0)}, {s(sWV)}, {s(sROT)}\ns_and_b32 {s(t0)}, {s(t0)}, 7\ns_lshl_b32 {s(t1)}, {s(t0)}, 7\ns_lshl_b32 {s(t2)}, {s(t0)}, 11")
    a(f"s_lshl_b32 {s(t3)}, {s(sWV)}, 2\ns_add_u32 {s(t3)}, {s(t3)}, {s(sJS)}\ns_lshl_b32 {s(t3)}, {s(t3)}, 11\ns_lshl_b32 {s(t4)}, {s(sWV)}, 11")
    if P["STAMP"]: a(f"v_mov_b32 v{VST}, 0")
    a(f"s_mov_b32 {s(rX+2)}, {2048*1024}\ns_mov_b32 {s(rX+3)}, 0x20000\ns_mov_b32 {s(rOUT+2)}, 16384\ns_mov_b32 {s(rOUT+3)}, 0x20000")
    a(f"s_add_u32 m0, {s(t3)}, {X_}\ns_cmp_ge_u32 {s(sCG)}, 4")
    a("s_waitcnt lgkmcnt(0)")
    stamp(0); cyc(14)
    a(f"s_mov_b32 {s(rX)}, {s(pX)}\ns_mov_b32 {s(rX+1)}, {s(pX+1)}")
    dma(vXs, rX, s(t1), pol=NT('x'))
    a(f"s_cselect_b32 {s(rOUT)}, {s(pWV)}, {s(pWK)}\ns_cselect_b32 {s(rOUT+1)}, {s(pWV+1)}, {s(pWK+1)}")
    a(f"s_add_u32 m0, {s(t3)}, {X_+1024}\ns_load_dword {s(sTAG)}, {s(pWS,2)}, 0")
    dma(vXs+1, rX, s(t1), pol=NT('x'))
    a(f"s_mov_b32 m0, {s(t4)}\ns_cmp_ge_u32 s2, {P['TLBN']}")
    dma(vKs, rOUT, s(t2)); dma(vKs, rOUT, s(t2), mod="offset:1024 ")
    if P["TLB"]:
        a.c("touch the other buffers once (one per wave) so that their address translations are fetched early")
        a("s_cbranch_scc1 L_notlb\ns_load_dword s3, s[90:91], 0")
        a.label("L_notlb")
    srd(a, rWS, pWS, WS_BYTES)
    a(f"s_cmp_ge_u32 {s(sWV)}, 4\ns_cbranch_scc1 L_B")

    a.c("---------------- A waves: wq loads and set-up while the tiles are in flight")
    vIDX, vKo, vVo, vWO, vWL, vRO, vRL, vG, vOB, vL4 = 1, 2, 3, 4, 5, 6, 9, 12, 13, 14
    S0, S1, KVR, QF, O = 16, 32, 48, 96, 128
    sKVo, sOB, sQo, sM0 = 80, 81, 82, 83
    vXa, vTq, vD, vFl = 32, 36, 37, 38
    srd(a, rA, pWQ, 512*1024)
    a.c("wq source: 128-byte rows, slot holds chunk slot ^ (4*((row>>1)&1))")
    a(f"v_lshrrev_b32 v16, 2, v0\nv_and_b32 v16, 4, v16\nv_and_b32 v17, 7, v0\nv_xor_b32 v16, v16, v17\nv_lshlrev_b32 v16, 4, v16\nv_lshrrev_b32 v17, 3, v0\nv_lshl_add_u32 v16, v17, 10, v16")
    a(f"s_lshl_b32 {s(t0)}, {s(sCG)}, 7\nv_add_u32 {v(vD)}, {s(t0)}, v16")
    a(f"s_lshl_b32 {s(sQo)}, {s(sROT)}, 3\ns_add_u32 {s(sQo)}, {s(sQo)}, {s(sW)}\ns_lshl_b32 {s(sQo)}, {s(sQo)}, 13\ns_lshl_b32 {s(sM0)}, {s(sW)}, 10")
    def wq_lds(kb): return RING_ + (kb & 3)*16384 + (kb >> 2)*8192
    def wq_issue(kb):
        a(f"s_add_u32 m0, {s(sM0)}, {wq_lds(kb)}\ns_add_u32 {s(t0)}, {s(sQo)}, 0x8000")
        dma(vD, rA, s(sQo), pol=NT('q'))
        a(f"s_add_u32 m0, {s(sM0)}, {wq_lds(kb)+4096}\ns_add_u32 {s(sQo)}, {s(sQo)}, 0x10000")
        dma(vD, rA, s(t0), pol=NT('q'))
        a(f"s_and_b32 {s(sQo)}, {s(sQo)}, 0x7ffff")
    a(f"s_and_b32 {s(t0)}, {s(sW)}, 1\ns_lshl_b32 {s(t0)}, {s(t0)}, 12\ns_add_u32 {s(t0)}, {s(t0)}, {X_}")
    x32_addr(vXa, 16, s(t0))
    a.c("wq transpose-read: row 8h+r, chunk 4u+2grp+(c&1), sub c>>1")
    a(f"v_lshrrev_b32 v16, 5, v0\nv_bfe_u32 v17, v0, 2, 2\nv_lshl_add_u32 v16, v16, 3, v17\nv_lshlrev_b32 v16, 7, v16")
    a(f"v_bfe_u32 v17, v0, 4, 1\nv_lshl_add_u32 v16, v17, 5, v16\nv_and_b32 v17, 1, v0\nv_lshl_add_u32 v16, v17, 4, v16\nv_and_b32 v17, 2, v0\nv_lshl_add_u32 v16, v17, 2, v16")
    a(f"v_and_b32 v17, 8, v0\nv_lshl_add_u32 v16, v17, 3, v16\ns_lshr_b32 {s(t0)}, {s(sW)}, 1\ns_lshl_b32 {s(t0)}, {s(t0)}, 6\nv_xor_b32 v16, {s(t0)}, v16\nv_add_u32 {v(vTq)}, {RING_}, v16")
    a(f"v_mov_b32 {v(vIDX)}, {hex(IDX)}\nv_lshlrev_b32 {v(vL4)}, 2, v0\nv_lshlrev_b32 v16, 4, v0")
    a(f"s_lshl_b32 {s(t0)}, {s(sW)}, 15\ns_add_u32 {s(t0)}, {s(t0)}, {KV}\nv_add_u32 {v(vKo)}, {s(t0)}, v16")
    a(f"v_and_b32 v17, 15, v0\nv_lshlrev_b32 v17, 4, v17\nv_lshrrev_b32 v18, 5, v0\nv_lshl_add_u32 v17, v18, 8, v17\nv_add_u32 {v(vVo)}, {s(t0)}, v17")
    a(f"v_mov_b32 {v(vOB)}, v16")
    a(f"s_mul_i32 {s(t0)}, {s(sW)}, 6144\nv_add_u32 {v(vWO)}, {s(t0)}, v16\ns_mul_i32 {s(t0)}, {s(sW)}, 768\nv_add_u32 {v(vWL)}, {s(t0)}, {v(vL4)}")
    for i in range(3):
        a(f"s_add_u32 {s(t0)}, {s(sW)}, {3-i}\ns_and_b32 {s(t0)}, {s(t0)}, 3\ns_mul_i32 {s(t0)}, {s(t0)}, 3\ns_add_u32 {s(t0)}, {s(t0)}, {i}")
        a(f"s_lshl_b32 {s(t1)}, {s(t0)}, 11\nv_add_u32 {v(vRO+i)}, {s(t1)}, v16\ns_lshl_b32 {s(t1)}, {s(t0)}, 8\nv_add_u32 {v(vRL+i)}, {s(t1)}, {v(vL4)}")
    a(f"s_lshl_b32 {s(t0)}, {s(sW)}, 14\ns_add_u32 {s(t0)}, {s(t0)}, {RING_+QG}\nv_add_u32 v39, {s(t0)}, v16")
    obuf_soff(sOB)
    a(f"s_lshr_b32 {s(sKVo)}, s2, 3\ns_lshl_b32 {s(sKVo)}, {s(sKVo)}, 11\ns_and_b32 {s(sKVo)}, {s(sKVo)}, 0x7fff")
    a(f"s_mov_b32 {s(sC0)}, 0xffff\ns_mov_b32 {s(sC0+1)}, 0xffff\ns_mov_b32 {s(sC0+2)}, {f32(0.25*LOG2E)}\ns_mov_b32 {s(sC0+3)}, {f32(0.25*LOG2E)}")
    a(f"s_and_b32 {s(t0)}, {s(sW)}, 1\ns_lshl_b32 {s(t0)}, {s(t0)}, 7\nv_and_b32 {v(vG)}, 31, v0\nv_lshl_add_u32 {v(vG)}, {v(vG)}, 2, {s(t0)}")
    a(f"v_lshrrev_b32 {v(vFl)}, 3, v0\nv_and_b32 v17, 7, v0\nv_lshlrev_b32 v17, 2, v17\nv_lshl_add_u32 {v(vFl)}, {v(vFl)}, 7, v17\ns_add_u32 {s(t3)}, {s(sM0)}, {FKV}")
    a("v_mov_b32 v17, -1")
    for r in range(2):
        for i in range(3): a(f"ds_write_b32 {v(vWL)}, v17 offset:{L_+(12*r+i)*256}")
    a.c("V operand padding rows: ones in rows 16 and 20 (row sums), zero elsewhere")
    a(f"v_and_b32 v19, 27, v0\nv_cmp_eq_u32 vcc, 16, v19\nv_mov_b32 v18, 0x3f803f80\ns_nop 0\nv_cndmask_b32 v19, 0, v18, vcc")
    for sl in range(4):
        for i in range(8): a(f"v_mov_b32 {v(KVR+12*sl+4+i)}, v19")
    for i in range(8): a(f"v_mov_b32 {v(S1+8+i)}, 0")
    for c in range(8): a(f"v_mfma_f32_32x32x8bf16_1k {v(O+16*c,16)}, {v(S1+8,2)}, {v(S1+8,2)}, 0")
    NQ0 = P.get("NQ0", 2)
    for kb in range(NQ0): wq_issue(kb)
    a(f"s_waitcnt vmcnt({2*NQ0}) lgkmcnt(0)\ns_barrier")
    cyc(32)
    for kb in range(NQ0, 8): wq_issue(kb)
    a("s_waitcnt vmcnt(0) lgkmcnt(0)")
    cyc(33)
    a("s_barrier")
    a.reset()
    tag_from_epoch()
    stamp(1)
    QA = 16
    def q_read(ks):
        st = QF + 8*(ks % 4); kb, j = ks >> 2, ks & 3
        a.lds(f"ds_read_b128 {v(st,4)}, {v(vXa+j)} offset:{kb*8192}", ("f", ks))
        for rd in range(2):
            a.lds(f"ds_read_b64_tr_b16 {v(st+4+2*rd,2)}, {v(vTq)} offset:{wq_lds(kb)-RING_ + j*2048 + rd*512}", ("f", ks))
    def q_mfma(ks):
        st = QF + 8*(ks % 4)
        a.wait(lg=("f", ks))
        a(f"v_mfma_f32_32x32x16_bf16 {v(QA,16)}, {v(st+4,4)}, {v(st,4)}, {v(QA,16) if ks else 0}")
    for ks in range(3): q_read(ks)
    for ks in range(32):
        if ks + 3 == 16: a("s_barrier")
        if ks + 3 < 32: q_read(ks + 3)
        if ks + 3 == 32:
            a(f"buffer_load_dword {v(vD)}, {v(vFl)}, {s(rWS,4)}, {s(t3)} offen sc1")
            a.wait_all(vm=False); a("s_barrier")
        q_mfma(ks)
    stamp(2)
    for i in range(4):
        a(f"s_add_u32 {s(t0)}, {s(sW)}, {i+1}\ns_and_b32 {s(t1)}, {s(t0)}, 1\ns_lshl_b32 {s(t1)}, {s(t1)}, 14\ns_and_b32 {s(t0)}, {s(t0)}, 2\ns_lshl_b32 {s(t0)}, {s(t0)}, 12")
        a(f"s_add_u32 {s(t0)}, {s(t0)}, {s(t1)}\ns_add_u32 {s(t0)}, {s(t0)}, {RING_+QG}\nv_lshl_add_u32 {v(vXa+i)}, v0, 4, {s(t0)}")
        if i == 1:
            for k in range(0, 16, 2): a(f"v_pk_mul_f32 {v(QA+k,2)}, {v(QA+k,2)}, {s(sC0+2,2)}")
            for k in range(8): a(f"v_cvt_pk_bf16_f32 {v(QA+k)}, {v(QA+2*k)}, {v(QA+2*k+1)}")
            a(f"v_mov_b32 v24, 1\nds_write_b128 v39, {v(QA,4)}\nds_write_b128 v39, {v(QA+4,4)} offset:8192\nds_add_u32 {v(vL4)}, v24 offset:{CA_}")
    stamp(3)
    spin_init(); a("s_branch L_kvchk"); a.label("L_kvpoll")
    a(f"buffer_load_dword {v(vD)}, {v(vFl)}, {s(rWS,4)}, {s(t3)} offen sc1")
    a.label("L_kvchk")
    a(f"s_waitcnt vmcnt(0)\nv_cmp_ne_u32 vcc, {s(sTAG)}, {v(vD)}")
    spin_back("L_kvpoll")
    stamp(4)
    def kv_load(sl):
        a(f"buffer_load_dwordx4 {v(KVR+12*sl,4)}, {v(vKo)}, {s(rWS,4)}, {s(sKVo)} offen sc1")
        a(f"s_mov_b64 exec, {s(sC0,2)}")
        a(f"buffer_load_dwordx4 {v(KVR+12*sl+4,4)}, {v(vVo)}, {s(rWS,4)}, {s(sKVo)} offen offset:1024 sc1")
        a(f"buffer_load_dwordx4 {v(KVR+12*sl+8,4)}, {v(vVo)}, {s(rWS,4)}, {s(sKVo)} offen offset:1536 sc1")
        a(f"s_mov_b64 exec, -1\ns_add_u32 {s(sKVo)}, {s(sKVo)}, 2048\ns_and_b32 {s(sKVo)}, {s(sKVo)}, 0x7fff")
    for sl in range(3): kv_load(sl)
    lds_wait(vL4, CA_, 4, 25)
    for i in range(4):
        a(f"ds_read_b128 {v(QF+4*i,4)}, {v(vXa+i)}\nds_read_b128 {v(QF+16+4*i,4)}, {v(vXa+i)} offset:32768")
    a(f"ds_add_u32 {v(vL4)}, v24 offset:{CA_}")
    prio(1)
    QK = lambda dst, c, k: f"v_mfma_f32_32x32x16_bf16 {v(dst,16)}, {v(KVR+12*k,4)}, {v(QF+4*c,4)}, 0"
    PV0 = lambda src, c, k: f"v_smfmac_f32_32x32x32_bf16 {v(O+16*c,16)}, {v(KVR+12*k+4,4)}, {v(src,8)}, {v(vIDX)}"
    PV1 = lambda src, c, k: f"v_smfmac_f32_32x32x32_bf16 {v(O+16*c,16)}, {v(KVR+12*k+8,4)}, {v(src+8,8)}, {v(vIDX)}"
    p1, pq, p0 = P.get("P1", 2), P.get("PQ", 5), P.get("P0", 10)
    def tile(n, prev, cur_, nxt, ev):
        cb, ob = (S0, S1) if n % 2 == 0 else (S1, S0)
        for k in range(16):
            for f in ev.get(k, []): f()
            if k == p1: a(PV1(ob, *prev))
            if k == pq and nxt: a(QK(ob, *nxt))
            if k == p0: a(PV0(cb, *cur_))
            a(f"v_exp_f32 {v(cb+k)}, {v(cb+k)}")
    def flush(c):
        r, i = c >> 2, c & 3
        ob = (O1_, O2_)[r] + i*2048
        a(f"ds_write_b128 {v(vWO)}, {v(O+16*c,4)} offset:{ob}\nds_write_b128 {v(vWO)}, {v(O+16*c+4,4)} offset:{ob+1024}")
        a(f"ds_write_b32 {v(vWL)}, {v(O+16*c+8)} offset:{L_+(12*r+i)*256}")
    def gather(r):
        T = O + 64*r
        for i in range(3): a(f"ds_read_b32 {v(T+16*i+8)}, {v(vRL+i)} offset:{L_+12*r*256}")
        for i in range(3):
            for hf in range(2): a(f"ds_read_b128 {v(T+16*i+4*hf,4)}, {v(vRO+i)} offset:{(O1_, O2_)[r]+hf*1024}")
    def gcheck(r):
        T = O + 64*r
        a(f"s_waitcnt lgkmcnt(0)\nv_max3_u32 {v(T+10)}, {v(T+8)}, {v(T+24)}, {v(T+40)}\nv_cmp_eq_u32 vcc, -1, {v(T+10)}")
    def acc9(d, x):
        for i in range(0, 8, 2): a(f"v_pk_add_f32 {v(d+i,2)}, {v(d+i,2)}, {v(x+i,2)}")
        a(f"v_add_f32 {v(d+8)}, {v(d+8)}, {v(x+8)}")
    def finish(r):
        T = O + 64*r; W = T + 48
        gcheck(r)
        a(f"s_cbranch_vccnz L_retry{r}"); a.label(f"L_got{r}")
        acc9(T, T+16); acc9(T, T+32); acc9(W, T)
        lo = (127 + P["LO"]) << 23; hi = (127 + P["HI"]) << 23
        a.c("row sums outside the safe range: redo this tile with the true row maximum")
        a(f"v_subrev_u32 {v(T)}, {hex(lo)}, {v(W+8)}\nv_cmp_le_u32 vcc, {hex(0 if P['FORCE_SLOW'] else hi-lo)}, {v(T)}")
        a(f"s_cbranch_vccnz L_slow{r}"); a.label(f"L_back{r}")
        a(f"v_rcp_f32 {v(T)}, {v(W+8)}\ns_nop 0\nv_mul_f32 {v(T)}, {v(T)}, {v(vVo)}")
        for i in range(0, 8, 2): a(f"v_pk_mul_f32 {v(W+i,2)}, {v(W+i,2)}, {v(T,2)} op_sel_hi:[1,0]")
        for i in range(4): a(f"v_cvt_pk_bf16_f32 {v(W+i)}, {v(W+2*i)}, {v(W+2*i+1)}")
        a(f"v_min_u32 {v(W)}, -2, {v(W)}")
        a(f"buffer_store_dwordx4 {v(W,4)}, {v(vOB)}, {s(rWS,4)}, {s(sOB)} offen offset:{r*1024} {XM}")
    def b_read(): a(f"ds_read_b32 {v(vKo)}, {v(vL4)} offset:{CB_}\nds_read_b32 {v(vVo)}, {v(vG)} offset:{G_}")
    def b_check():
        a(f"s_waitcnt vmcnt(0) lgkmcnt(0)\nv_cmp_gt_i32 vcc, 0, {v(vKo)}\ns_cbranch_vccnz L_bretry"); a.label("L_bgot")
    a("s_waitcnt vmcnt(6) lgkmcnt(0)")
    if P.get("NOATT"): a("s_sleep 127\ns_sleep 127\ns_sleep 127")
    a(QK(S0, 0, 0)); a(f"s_mov_b32 {s(t0)}, 3\ns_nop 10")
    stamp(5)
    a(".p2align 3")
    a.label("L_att")
    seq = [(c, k) for k in range(4) for c in range(8)]
    for n, cu in enumerate(seq):
        ev = {}
        if cu[0] == 0: ev[12] = [lambda: kv_load((cu[1] + 3) % 4)]
        if cu[0] == 7: ev[pq] = [lambda: a("s_waitcnt vmcnt(6)")]
        tile(n, seq[n-1], cu, seq[(n+1) % 32], ev)
    a(f"s_sub_u32 {s(t0)}, {s(t0)}, 1\ns_cmp_lg_u32 {s(t0)}, 0\ns_cbranch_scc1 L_att")
    stamp(6)
    seq = [(0,0),(0,1),(0,2),(1,0),(1,1),(1,2),(0,3),(1,3)] + [(c, k) for c in range(2, 8) for k in range(4)]
    for n, cu in enumerate(seq):
        ev = {}
        prev = seq[n-1] if n else (7, 3)
        if n == 0: ev[pq] = [lambda: a("s_waitcnt vmcnt(0)")]; ev[12] = [lambda: kv_load(3), b_read]
        if cu == (1, 2): ev[pq] = [b_check]
        if n and prev[1] == 3:
            ev[13] = [(lambda: finish(0)) if prev[0] == 3 else (lambda: flush(prev[0]))]
        if cu in ((3, 3), (7, 3)): ev[7] = [lambda: gather(cu[0] >> 2)]
        tile(n, prev, cu, seq[n+1] if n < 31 else None, ev)
    a("s_nop 1")
    a(PV1(S1, 7, 3))
    finish(1)
    stamp(7)
    a("s_barrier")
    stamp_out()
    if P.get("DIAGA"): a("s_barrier\ns_branch L_hold")
    a("s_endpgm")
    def a_tail():
        for r in range(2):
            a.label(f"L_retry{r}"); spin_init(); a.label(f"L_retryl{r}")
            gather(r); gcheck(r); spin_back(f"L_retryl{r}")
            a(f"s_branch L_got{r}")
        a.label("L_bretry"); spin_init(); a.label("L_bretryl")
        b_read(); a(f"s_waitcnt lgkmcnt(0)\nv_cmp_gt_i32 vcc, 0, {v(vKo)}"); spin_back("L_bretryl", 1)
        a("s_branch L_bgot")
    a_tail()

    def slow_path(lbl, back, T, Qf, R):
        Kf, V0, V1, S, M, vk, vv, tm = R, R+4, R+8, R+12, R+28, R+29, R+30, R+31
        a.label(lbl)
        a(f"v_lshlrev_b32 {v(vk)}, 4, v0\nv_lshrrev_b32 {v(vv)}, 5, v0\nv_lshlrev_b32 {v(vv)}, 8, {v(vv)}")
        a(f"v_and_b32 {v(tm)}, 15, v0\nv_lshl_add_u32 {v(vv)}, {v(tm)}, 4, {v(vv)}")
        a(f"v_mov_b32 {v(M)}, 0xff800000")
        for i in range(8): a(f"v_mov_b32 {v(V0+i)}, 0x3f803f80")
        for i in range(16): a(f"v_mov_b32 {v(T+i)}, 0")
        a(f"s_mov_b32 {s(t4)}, {KV}")
        l1 = a.newlabel("L_sm"); a.label(l1)
        a(f"buffer_load_dwordx4 {v(Kf,4)}, {v(vk)}, {s(rWS,4)}, {s(t4)} offen sc1\ns_waitcnt vmcnt(0)")
        a(f"v_mfma_f32_32x32x16_bf16 {v(S,16)}, {v(Kf,4)}, {v(Qf,4)}, 0\ns_nop 15")
        for i in range(8): a(f"v_max3_f32 {v(M)}, {v(M)}, {v(S+2*i)}, {v(S+2*i+1)}")
        a(f"s_add_u32 {s(t4)}, {s(t4)}, 2048\ns_cmp_lt_u32 {s(t4)}, {KV+64*2048}\ns_cbranch_scc1 {l1}")
        a(f"v_mov_b32 {v(tm)}, {v(M)}\ns_nop 1\nv_permlane32_swap_b32 {v(tm)}, {v(M)}\ns_nop 1\nv_max_f32 {v(M)}, {v(M)}, {v(tm)}")
        a(f"s_mov_b32 {s(t4)}, {KV}")
        l2 = a.newlabel("L_sp"); a.label(l2)
        a(f"buffer_load_dwordx4 {v(Kf,4)}, {v(vk)}, {s(rWS,4)}, {s(t4)} offen sc1")
        a(f"s_mov_b64 exec, {s(sC0,2)}")
        a(f"buffer_load_dwordx4 {v(V0,4)}, {v(vv)}, {s(rWS,4)}, {s(t4)} offen offset:1024 sc1")
        a(f"buffer_load_dwordx4 {v(V1,4)}, {v(vv)}, {s(rWS,4)}, {s(t4)} offen offset:1536 sc1")
        a("s_mov_b64 exec, -1\ns_waitcnt vmcnt(0)")
        a(f"v_mfma_f32_32x32x16_bf16 {v(S,16)}, {v(Kf,4)}, {v(Qf,4)}, 0\ns_nop 15")
        for i in range(16): a(f"v_sub_f32 {v(S+i)}, {v(S+i)}, {v(M)}")
        for i in range(16): a(f"v_exp_f32 {v(S+i)}, {v(S+i)}")
        a("s_nop 1")
        a(f"v_smfmac_f32_32x32x32_bf16 {v(T,16)}, {v(V0,4)}, {v(S,8)}, v1")
        a(f"v_smfmac_f32_32x32x32_bf16 {v(T,16)}, {v(V1,4)}, {v(S+8,8)}, v1")
        a(f"s_add_u32 {s(t4)}, {s(t4)}, 2048\ns_cmp_lt_u32 {s(t4)}, {KV+64*2048}\ns_cbranch_scc1 {l2}")
        a(f"s_nop 15\ns_branch {back}")

    a.label("L_B")
    a.reset(); cur["prio"] = 0
    vW, vTr, vXb, vL16, vL4, vG1, vX16 = 3, 12, 6, 10, 11, 13, 14
    ACC, WF, XB, TM = 16, 112, 160, 192
    vTr0 = 200
    sRING, sBLK, sOOB, sU, sXo, sM0 = 80, 81, 82, 83, 84, 85
    a(f"v_lshlrev_b32 {v(vL16)}, 4, v0\nv_lshlrev_b32 {v(vL4)}, 2, v0")
    a(f"s_cmp_lg_u32 {s(sW)}, 3\ns_cbranch_scc1 L_B0")
    srd(a, rW2, pGW, 1024)
    a(f"s_lshl_b32 {s(t2)}, {s(sROT)}, 7\nv_add_u32 v16, {s(t2)}, {v(vL16)}\nv_and_b32 v16, 0x3ff, v16\ns_mov_b32 m0, {GW_}\nv_mov_b32 v17, 0\nv_mov_b32 v18, -8")
    dma(16, rW2, "0")
    a(f"ds_write_b32 {v(vL4)}, v17 offset:{CA_}\nds_write_b32 {v(vL4)}, v18 offset:{CB_}")
    a.label("L_B0")
    a(f"s_lshl_b32 {s(sRING)}, {s(sW)}, 14\ns_add_u32 {s(sRING)}, {s(sRING)}, {RING_}")
    a(f"s_lshl_b32 {s(t0)}, {s(sCG)}, 2\ns_add_u32 {s(sU)}, {s(t0)}, {s(sW)}")
    a(f"s_cmp_gt_u32 {s(sU)}, 28\ns_cselect_b32 {s(t1)}, 0, {512*2752}\ns_cselect_b32 {s(t2)}, 0, {4*JS}")
    srd(a, rA, pW1, s(t1)); srd(a, rB, pW3, s(t1))
    a(f"s_mul_i32 {s(t0)}, {s(sTG)}, {4*JS}\ns_add_u32 {s(t0)}, {s(t0)}, {HBUF}")
    srd(a, rH, pWS, s(t2), off=s(t0))
    a.c("remaining x rows: wave j loads 16-token group (js+1+j)&3")
    a(f"s_add_u32 {s(t0)}, {s(sJS)}, {s(sW)}\ns_add_u32 {s(t0)}, {s(t0)}, 1\ns_and_b32 {s(t0)}, {s(t0)}, 3\ns_lshl_b32 {s(sM0)}, {s(t0)}, 11")
    a(f"s_xor_b32 {s(t0)}, {s(t0)}, {s(sJS)}\ns_lshl_b32 {s(t0)}, {s(t0)}, 14\nv_xor_b32 {v(vXs)}, {s(t0)}, {v(vXs)}\nv_xor_b32 {v(vXs+1)}, {s(t0)}, {v(vXs+1)}\ns_lshl_b32 {s(sXo)}, {s(sROT)}, 7")
    a(f"s_mul_i32 {s(t0)}, {s(sU)}, 96")
    for q in range(3):
        a(f"v_add_u32 v16, {64*q}, v0\nv_mul_u32_u24 v17, 10923, v16\nv_lshrrev_b32 v17, 16, v17\nv_mul_u32_u24 v18, 6, v17\nv_sub_u32 v18, v16, v18")
        a(f"v_mul_u32_u24 v17, 2752, v17\nv_lshl_add_u32 v17, v18, 4, v17\nv_add_u32 {v(vW+q)}, {s(t0)}, v17")
    a(f"s_mul_i32 {s(sBLK)}, {s(sROT)}, {64*2752}\ns_mul_i32 {s(t5)}, {s(sW)}, 3072")
    def w13_issue(base, off, part, soff, w3=W3OFF):
        r = rA if part < 3 else rB
        a(f"s_add_u32 m0, {s(base)}, {off + (part//3)*w3 + (part%3)*1024}\ns_nop 0")
        a(f"buffer_load_dwordx4 {v(vW + part%3)}, {s(r,4)}, {s(soff)} offen {NT('w')}lds")
    def blk_next():
        a(f"s_add_u32 {s(sBLK)}, {s(sBLK)}, {32*2752}\ns_cmp_eq_u32 {s(sBLK)}, {512*2752}\ns_cselect_b32 {s(sBLK)}, 0, {s(sBLK)}")
    def blk_issue(base, off, w3=W3OFF):
        for p in range(6): w13_issue(base, off, p, sBLK, w3)
        blk_next()
    a.c("w1 / w3 transpose-read address: grp*w3 + (8h+r)*96 + c*8")
    a(f"v_lshrrev_b32 v16, 5, v0\nv_lshlrev_b32 v16, 3, v16\nv_bfe_u32 v17, v0, 2, 2\nv_add_u32 v16, v16, v17\nv_mul_u32_u24 v16, 96, v16")
    a(f"v_and_b32 v17, 3, v0\nv_lshl_add_u32 v16, v17, 3, v16\nv_bfe_u32 v17, v0, 4, 1\nv_mul_u32_u24 v18, {W3OFF}, v17\nv_mul_u32_u24 v17, {W3OFF0}, v17")
    a(f"v_add3_u32 {v(vTr)}, v16, v18, {s(sRING)}\nv_add3_u32 {v(vTr0)}, v16, v17, {s(t5)}")
    x32_addr(vXb, 16, X_)
    x16_addr(vX16, 16)
    a(f"v_mov_b32 {v(TM)}, 0\nv_mov_b32 {v(TM+1)}, 0\ns_nop 1")
    for i in range(6): a(f"v_mfma_f32_32x32x8bf16_1k {v(ACC+16*i,16)}, {v(TM,2)}, {v(TM,2)}, 0")
    a(f"s_cmp_eq_u32 {s(sW)}, 3\ns_cbranch_scc1 L_Bp")
    a("s_waitcnt vmcnt(0) lgkmcnt(0)\ns_barrier")
    tag_from_epoch()
    for kb in range(8):
        for i in range(2):
            a(f"s_add_u32 m0, {s(sM0)}, {X_+kb*8192+i*1024}")
            a(f"s_and_b32 {s(sXo)}, {s(sXo)}, 0x3ff" if i == 0 else "s_nop 0")
            dma(vXs+i, rX, s(sXo))
        a(f"s_add_u32 {s(sXo)}, {s(sXo)}, 128")
    a("s_waitcnt vmcnt(8)")
    cyc(33+8)
    a("s_barrier")
    a("s_branch L_B1")

    a.label("L_Bp")
    a.c("wave 7: K (cg < 4) or V of this workgroup's 16-token group")
    pT, pX_, pA, KA, VA, F = 202, 204, 206, 208, 212, 112
    a.c("transpose-read address in a 32-byte-row image: ((8G+r) ^ (4*(G&1)))*32 + c*8")
    a(f"v_lshrrev_b32 v216, 4, v0\nv_lshlrev_b32 {v(pT)}, 8, v216\nv_and_b32 v216, 1, v216\nv_lshl_add_u32 {v(pT)}, v216, 7, {v(pT)}")
    a(f"v_and_b32 v216, 15, v0\nv_lshl_add_u32 {v(pT)}, v216, 3, {v(pT)}\nv_xor_b32 {v(pT+1)}, 128, {v(pT)}")
    a(f"s_add_u32 {s(t0)}, {s(sM0)}, {X_}\nv_add_u32 {v(pX_)}, {s(t0)}, {v(vX16)}\nv_xor_b32 {v(pX_+1)}, 64, {v(pX_)}")
    a(f"s_lshr_b32 {s(t1)}, {s(sCG)}, 2\ns_sub_u32 {s(t0)}, 9, {s(t1)}\nv_lshrrev_b32 v217, 5, v0\nv_lshlrev_b32 v217, {s(t0)}, v217\nv_lshl_add_u32 {v(pA)}, v216, 4, v217")
    a(f"s_lshl_b32 {s(t4)}, {s(sTG)}, 1\ns_lshr_b32 {s(t0)}, {s(sJS)}, 1\ns_add_u32 {s(t4)}, {s(t4)}, {s(t0)}\ns_lshl_b32 {s(t4)}, {s(t4)}, 1\ns_add_u32 {s(t4)}, {s(t4)}, {s(t1)}\ns_lshl_b32 {s(t4)}, {s(t4)}, 10")
    a(f"s_and_b32 {s(t0)}, {s(sJS)}, 1\ns_add_u32 {s(t1)}, {s(t1)}, 8\ns_lshl_b32 {s(t0)}, {s(t0)}, {s(t1)}\ns_add_u32 {s(t4)}, {s(t4)}, {s(t0)}\ns_add_u32 {s(t4)}, {s(t4)}, {KV}")
    a(f"s_lshl_b32 {s(t3)}, {s(sTG)}, 7\ns_lshl_b32 {s(t0)}, {s(sCG)}, 2\ns_add_u32 {s(t3)}, {s(t3)}, {s(t0)}\ns_add_u32 {s(t3)}, {s(t3)}, {FKV}")
    a(f"s_cmp_ge_u32 {s(sCG)}, 4\ns_cselect_b64 vcc, -1, 0")
    a("s_waitcnt vmcnt(0) lgkmcnt(0)\ns_barrier")
    a.reset()
    def kvp_read(ks):
        st = F + 8*(ks % 6)
        a.lds(f"ds_read_b128 {v(st,4)}, {v(pX_+(ks&1))} offset:{(ks>>1)*8192}", ("f", ks))
        for rd in range(2): a.lds(f"ds_read_b64_tr_b16 {v(st+4+2*rd,2)}, {v(pT+rd)} offset:{ks*1024}", ("f", ks))
    for ks in range(5): kvp_read(ks)
    tag_from_epoch()
    for ks in range(16):
        if ks + 5 < 16: kvp_read(ks + 5)
        st = F + 8*(ks % 6)
        a.wait(lg=("f", ks))
        a(f"v_mfma_f32_16x16x32_bf16 {v(KA,4)}, {v(st+4,4)}, {v(st,4)}, {v(KA,4) if ks else 0}")
        a(f"v_mfma_f32_16x16x32_bf16 {v(VA,4)}, {v(st,4)}, {v(st+4,4)}, {v(VA,4) if ks else 0}")
    a(f"v_mov_b32 v220, {s(sTAG)}\ns_nop 5")
    a(f"v_cvt_pk_bf16_f32 v216, {v(KA)}, {v(KA+1)}\nv_cvt_pk_bf16_f32 v217, {v(KA+2)}, {v(KA+3)}")
    a(f"v_cvt_pk_bf16_f32 v218, {v(VA)}, {v(VA+1)}\nv_cvt_pk_bf16_f32 v219, {v(VA+2)}, {v(VA+3)}")
    a("v_cndmask_b32 v216, v216, v218, vcc\nv_cndmask_b32 v217, v217, v219, vcc\nv_mov_b32 v218, v216\nv_mov_b32 v219, v217\ns_nop 0")
    a("v_permlane16_swap_b32 v216, v218\nv_permlane16_swap_b32 v217, v219\ns_mov_b32 exec_lo, 0xffff\ns_mov_b32 exec_hi, 0xffff")
    a(f"buffer_store_dwordx4 v[216:219], {v(pA)}, {s(rWS,4)}, {s(t4)} offen sc1")
    stamp(13)
    if not P.get("FLAG1"): a("s_barrier")
    a(f"s_mov_b64 exec, 1\ns_waitcnt vmcnt(0)\nbuffer_store_dword v220, {v(TM)}, {s(rWS,4)}, {s(t3)} offen sc1\ns_mov_b64 exec, -1")
    if P.get("FLAG1"): a("s_barrier")
    stamp(2)
    a.label("L_B1")
    a.reset()
    stamp(1)
    blk_issue(t5, 0, W3OFF0)
    a(f"s_lshl_b32 {s(t0)}, {s(sW)}, 11\ns_add_u32 {s(t0)}, {s(t0)}, {X_}\nv_add_u32 v1, {s(t0)}, {v(vX16)}\nv_xor_b32 v2, 64, v1\nv_and_b32 {v(vX16)}, 48, v0")
    a(f"s_cmp_eq_u32 {s(sW)}, 3\ns_cbranch_scc1 L_B2\ns_waitcnt vmcnt(6)")
    a.label("L_B2")
    a("s_barrier")
    if not P.get("GATE2", 1): a("s_barrier")
    a.c("gate of this wave's 16 tokens")
    z = 208
    def g_read(ks):
        st = WF + 8*(ks % 6)
        a.lds(f"ds_read_b128 {v(st,4)}, {v(1+(ks&1))} offset:{(ks>>1)*8192}", ("g", ks))
        a.lds(f"ds_read_b128 {v(st+4,4)}, {v(vX16)} offset:{GW_+ks*64}", ("g", ks))
    for ks in range(5): g_read(ks)
    for ks in range(16):
        if ks + 5 < 16: g_read(ks + 5)
        st = WF + 8*(ks % 6)
        a.wait(lg=("g", ks))
        a(f"v_mfma_f32_16x16x32_bf16 {v(z,4)}, {v(st+4,4)}, {v(st,4)}, {v(z,4) if ks else 0}")
    def trs(st, addr, off):
        return [f"ds_read_b64_tr_b16 {v(WF+24*st+12*ks+4*u+2*rd,2)}, {v(addr)} offset:{off + ks*1536 + rd*384 + u*32}"
                for ks in range(2) for u in range(3) for rd in range(2)]
    def xrs(st, off):
        return [f"ds_read_b128 {v(XB+16*st+8*ks+4*t,4)}, {v(vXb+2*st+ks)} offset:{off + t*4096}" for ks in range(2) for t in range(2)]
    if P.get("GATE2", 1): a("s_barrier")
    for x in xrs(0, 0): a(x)
    prio(2)
    a(f"s_lshl_b32 {s(t0)}, {s(sW)}, 6\nv_and_b32 v1, 15, v0\nv_lshl_add_u32 v1, v1, 2, {s(t0)}")
    a(f"v_cvt_pk_bf16_f32 {v(z)}, {v(z)}, {v(z)}\nv_and_b32 {v(z)}, 0xffff0000, {v(z)}")
    a(f"v_mul_f32 {v(z)}, {f32(-LOG2E)}, {v(z)}\nv_exp_f32 {v(z)}, {v(z)}\ns_nop 0\nv_add_f32 {v(z)}, 1.0, {v(z)}\nv_rcp_f32 {v(z)}, {v(z)}\ns_nop 0")
    a(f"v_cvt_pk_bf16_f32 {v(z)}, {v(z)}, {v(z)}\nv_and_b32 {v(z)}, 0xffff0000, {v(z)}")
    a(f"ds_write_b32 v1, {v(z)} offset:{G_}")
    prio(0)
    a(f"s_cmp_gt_u32 {s(sU)}, 28\ns_cbranch_scc1 L_Bh")
    blk_issue(sRING, SLOTOFF[1])
    a("s_waitcnt vmcnt(6)")
    for x in trs(0, vTr0, 0): a(x)
    a(f"s_mov_b32 {s(t0)}, 8\ns_mov_b32 {s(sOOB)}, {s(sBLK)}\ns_waitcnt lgkmcnt(0)")
    cyc(40)
    a(".p2align 3")
    a.label("L_ffn1")
    for st in range(2):
        M = [f"v_mfma_f32_32x32x16_bf16 {v(ACC+16*(2*u+t),16)}, {v(WF+24*st+12*ks+4*u,4)}, {v(XB+16*st+8*ks+4*t,4)}, {v(ACC+16*(2*u+t),16)}"
             for ks in range(2) for u in range(3) for t in range(2)]
        T = trs(st ^ 1, vTr, SLOTOFF[st ^ 1]); XR = xrs(st ^ 1, 8192 if st else 0)
        for k in range(3):
            a(M[k]); w13_issue(sRING, SLOTOFF[st], 2*k, sOOB); w13_issue(sRING, SLOTOFF[st], 2*k+1, sOOB)
        for x in XR: a(x)
        a(M[3]); a("s_waitcnt vmcnt(6)")
        for k in range(4):
            for x in T[3*k:3*k+3]: a(x)
            a(M[4+k])
        blk_next()
        if st == 1: a(f"s_sub_u32 {s(t0)}, {s(t0)}, 1")
        a(f"s_cmp_gt_u32 {s(t0)}, 1\ns_cselect_b32 {s(sOOB)}, {s(sBLK)}, 0x7ff00000")
        a(M[8])
        if st == 1:
            a("s_setprio 2")
            for j in range(4): a(f"v_add_u32 {v(vXb+j)}, 0x2000, {v(vXb+j)}")
            a("s_setprio 0")
        a(M[9]); a(M[10]); a(M[11])
        a("s_waitcnt lgkmcnt(0)")
    if P["STAMP"]:
        a(f"s_memtime s[100:101]\ns_add_u32 m0, {s(t0)}, 32\ns_setprio 2\ns_waitcnt lgkmcnt(0)\nv_writelane_b32 v{VST}, s100, m0\ns_setprio 0")
    a(f"s_cmp_lg_u32 {s(t0)}, 0\ns_cbranch_scc1 L_ffn1")
    stamp(3)
    a.label("L_Bh")
    a.reset()
    a.c("---- SwiGLU epilogue, publish h; prefetch [w2; wo] column slice into the shared ring")
    vD2, vONE, vFl, vTAG, vZ, vT2, vC = 1, 2, 3, 4, 5, 6, 12
    sWg, sHg, sOB = 84, 86, 87
    prio(2)
    a(f"v_mov_b32 {v(vONE)}, 1\ns_waitcnt vmcnt(0)\nds_add_u32 {v(vL4)}, {v(vONE)} offset:{CB_}")
    srd(a, rW2, pW2, 1376*1024); srd(a, rWO, pWO, 512*1024)
    obuf_soff(sOB)
    a.c("clear the partner wave's two o tiles to the not-yet-written sentinel")
    a("v_mov_b32 v6, -1\nv_mov_b32 v7, -1\nv_mov_b32 v8, -1\nv_mov_b32 v9, -1")
    a.vmem(f"buffer_store_dwordx4 v[6:9], {v(vL16)}, {s(rWS,4)}, {s(sOB)} offen {XM}", "st")
    a.vmem(f"buffer_store_dwordx4 v[6:9], {v(vL16)}, {s(rWS,4)}, {s(sOB)} offen offset:1024 {XM}", "st")
    a.c("[w2; wo] source: 128-byte rows, slot holds chunk slot ^ (4*((row>>1)&1))")
    a(f"v_lshrrev_b32 {v(TM)}, 2, v0\nv_and_b32 {v(TM)}, 4, {v(TM)}\nv_and_b32 {v(TM+1)}, 7, v0\nv_xor_b32 {v(TM)}, {v(TM)}, {v(TM+1)}\nv_lshlrev_b32 {v(TM)}, 4, {v(TM)}\nv_lshrrev_b32 {v(TM+1)}, 3, v0\nv_lshl_add_u32 {v(TM)}, {v(TM+1)}, 10, {v(TM)}")
    a(f"s_lshl_b32 {s(t0)}, {s(sW)}, 6\ns_add_u32 {s(t0)}, {s(t0)}, {s(sCG)}\ns_lshl_b32 {s(t0)}, {s(t0)}, 7\nv_add_u32 {v(vD2)}, {s(t0)}, {v(TM)}")
    a(f"s_mul_i32 {s(t0)}, {s(sROT)}, 11\ns_lshr_b32 {s(t0)}, {s(t0)}, 3\ns_lshl_b32 {s(sWg)}, {s(t0)}, 17\ns_lshl_b32 {s(sHg)}, {s(t0)}, 12")
    a(f"s_lshl_b32 {s(sM0)}, {s(sW)}, 10\ns_add_u32 {s(sM0)}, {s(sM0)}, {SB_}")
    a(f"s_mov_b32 {s(sC0)}, {f32(-LOG2E)}\ns_mov_b32 {s(sC0+1)}, {s(sC0)}\ns_mov_b32 {s(sC0+2)}, 1.0\ns_mov_b32 {s(sC0+3)}, 1.0")
    a(f"s_mul_i32 {s(t3)}, {s(sU)}, 3")
    NSL = 26
    wn = [0]
    def w_issue():
        st = wn[0]; wn[0] += 1
        a(f"s_add_u32 m0, {s(sM0)}, {(st % NSL)*4096}")
        if st < 44:
            a(f"s_add_u32 {s(t0)}, {s(sWg)}, {(st & 3)*32768}")
            dma(vD2, rW2, s(t0), ("w", st))
            if st & 3 == 3: a(f"s_add_u32 {s(sWg)}, {s(sWg)}, 0x20000\ns_cmp_eq_u32 {s(sWg)}, {11<<17}\ns_cselect_b32 {s(sWg)}, 0, {s(sWg)}")
        else:
            r, ci = (st - 44) >> 3, (st - 44) & 7
            a(f"s_mov_b32 {s(t0)}, {(2*ci+r)*32768}")
            dma(vD2, rWO, s(t0), ("w", st))
    NPF = P.get("NPF", 4)
    for u in range(3):
        a.c("h fragment address: (2*(U&1) + t)*JS + (U>>1)*1K")
        a(f"s_and_b32 {s(t4)}, {s(t3)}, 1\ns_mul_i32 {s(t4)}, {s(t4)}, {2*JS-512}\ns_lshl_b32 {s(t5)}, {s(t3)}, 9\ns_add_u32 {s(t4)}, {s(t4)}, {s(t5)}\ns_add_u32 {s(t5)}, {s(t4)}, {JS}\ns_add_u32 {s(t3)}, {s(t3)}, 1")
        for t in range(2):
            A_ = ACC + 16*(2*u+t)
            for i in range(0, 8, 2): a(f"v_pk_mul_f32 {v(TM+i,2)}, {v(A_+i,2)}, {s(sC0,2)}")
            for i in range(8): a(f"v_exp_f32 {v(TM+i)}, {v(TM+i)}")
            for i in range(0, 8, 2): a(f"v_pk_mul_f32 {v(A_+i,2)}, {v(A_+i,2)}, {v(A_+8+i,2)}")
            for i in range(0, 8, 2): a(f"v_pk_add_f32 {v(TM+i,2)}, {v(TM+i,2)}, {s(sC0+2,2)}")
            for i in range(8): a(f"v_rcp_f32 {v(TM+i)}, {v(TM+i)}")
            for i in range(0, 8, 2): a(f"v_pk_mul_f32 {v(A_+i,2)}, {v(A_+i,2)}, {v(TM+i,2)}")
            for i in range(4): a(f"v_cvt_pk_bf16_f32 {v(A_+8+i)}, {v(A_+2*i)}, {v(A_+2*i+1)}")
            a.vmem(f"buffer_store_dwordx4 {v(A_+8,4)}, {v(vL16)}, {s(rH,4)}, {s(t4+t)} offen {XM}", "st")
            if u == 0 and t == 0:
                lds_wait(vL4, CA_, 8, TM, 1); lds_wait(vL4, CB_, -4, TM, 1)
            if u < 2 and NPF:
                prio(0)
                for _ in range(NPF): w_issue()
                prio(2)
    stamp(4)
    a.c("transpose-read: row 16*kh + 4h + r, chunk 4cu + 2grp + (c&1), sub c>>1; local tile 0 is column half kh")
    a(f"v_lshrrev_b32 {v(TM)}, 5, v0\nv_bfe_u32 {v(TM+1)}, v0, 2, 2\nv_lshl_add_u32 {v(TM)}, {v(TM)}, 2, {v(TM+1)}\nv_lshlrev_b32 {v(TM)}, 7, {v(TM)}")
    a(f"v_bfe_u32 {v(TM+1)}, v0, 4, 1\nv_lshl_add_u32 {v(TM)}, {v(TM+1)}, 5, {v(TM)}\nv_and_b32 {v(TM+1)}, 1, v0\nv_lshl_add_u32 {v(TM)}, {v(TM+1)}, 4, {v(TM)}")
    a(f"v_and_b32 {v(TM+1)}, 2, v0\nv_lshl_add_u32 {v(TM)}, {v(TM+1)}, 2, {v(TM)}\nv_and_b32 {v(TM+1)}, 8, v0\nv_lshl_add_u32 {v(TM)}, {v(TM+1)}, 3, {v(TM)}")
    a(f"s_lshr_b32 {s(t0)}, {s(sW)}, 1\ns_mul_i32 {s(t0)}, {s(t0)}, {2048+64}\nv_xor_b32 {v(TM)}, {s(t0)}, {v(TM)}")
    a(f"v_add_u32 {v(vT2)}, {SB_}, {v(TM)}\nv_xor_b32 {v(vT2+1)}, 64, {v(vT2)}\nv_add_u32 {v(vT2+2)}, 0x10000, {v(vT2)}\nv_add_u32 {v(vT2+3)}, 0x10000, {v(vT2+1)}")
    a(f"v_mov_b32 {v(vZ)}, 0\nv_mov_b32 {v(vTAG)}, {s(sTAG)}")
    a(f"v_bfe_u32 {v(vFl)}, v0, 2, 3\nv_and_b32 {v(TM)}, 3, v0\nv_lshlrev_b32 {v(TM)}, 2, {v(TM)}\nv_lshl_add_u32 {v(vFl)}, {v(vFl)}, 7, {v(TM)}")
    a(f"s_and_b32 {s(t0)}, {s(sW)}, 1\ns_lshl_b32 {s(t0)}, {s(t0)}, 7\nv_and_b32 v14, 31, v0\nv_lshl_add_u32 {v(TM)}, v14, 2, {s(t0)}\nds_read_b32 {v(vG1)}, {v(TM)} offset:{G_}")
    a(f"s_lshl_b32 {s(t0)}, {s(sTG)}, 10\ns_add_u32 {s(t3)}, {s(t0)}, {FH}\ns_lshl_b32 {s(t0)}, {s(sCG)}, 7\ns_lshl_b32 {s(t1)}, {s(sW)}, 2\ns_add_u32 {s(t0)}, {s(t0)}, {s(t1)}\ns_add_u32 {s(t2)}, {s(t0)}, {s(t3)}")
    a(f"s_lshl_b32 {s(t0)}, {s(sTG)}, 2\ns_add_u32 {s(t0)}, {s(t0)}, {s(sW)}\ns_mul_i32 {s(t0)}, {s(t0)}, {JS}\ns_add_u32 {s(t0)}, {s(t0)}, {HBUF}")
    srd(a, rH, pWS, 43*1024, off=s(t0))
    a.wait(vm="st")
    a(f"s_mov_b64 exec, 1\nbuffer_store_dword {v(vTAG)}, {v(vZ)}, {s(rWS,4)}, {s(t2)} offen {XM}")
    a.c("every workgroup has published K / V under this launch's tag, so all have read the old epoch: hand it over")
    a(f"s_or_b32 {s(t0)}, s2, {s(sW)}\ns_cbranch_scc1 L_B4\nbuffer_store_dword {v(vTAG)}, {v(vZ)}, {s(rWS,4)}, 0 offen sc1")
    a.label("L_B4")
    a("s_mov_b64 exec, -1")
    stamp(5)
    prio(0)
    while wn[0] < NSL:
        w_issue(); a(f"s_waitcnt vmcnt({P.get('THR', 6)})")
    prio(2)
    spin_init(); a.label("L_hpoll")
    a(f"buffer_load_dword {v(TM)}, {v(vFl)}, {s(rWS,4)}, {s(t3)} offen sc1\ns_waitcnt vmcnt(0)")
    a(f"v_cmp_ne_u32 vcc, {s(sTAG)}, {v(TM)}")
    spin_back("L_hpoll", P.get("HSLEEP", 2))
    a(f"ds_add_u32 {v(vL4)}, {v(vONE)} offset:{CB_}")
    a.reset()
    stamp(6)
    AO, WB, HF, DH = 16, 48, 64, P.get('DH', 8)
    OF, WOF, RT = 64, 128, 48
    def h_issue(st):
        a.vmem(f"buffer_load_dwordx4 {v(HF+4*(st%DH),4)}, {v(vL16)}, {s(rH,4)}, {s(sHg)} offen offset:{(st&3)*1024} sc1", ("h", st))
        if st & 3 == 3: a(f"s_add_u32 {s(sHg)}, {s(sHg)}, 4096\ns_cmp_eq_u32 {s(sHg)}, {11<<12}\ns_cselect_b32 {s(sHg)}, 0, {s(sHg)}")
    def w_pull(st, dst, tag, cus=(0, 1)):
        sl = st % NSL
        for cu in cus:
            for rd in range(2):
                a.lds(f"ds_read_b64_tr_b16 {v(dst+4*cu+2*rd,2)}, {v(vT2+2*(sl>>4)+cu)} offset:{(sl&15)*4096+rd*1024}", tag)
    prio(0)
    for st in range(DH): h_issue(st)
    prio(2)
    lds_wait(vL4, CB_, 0, vC, 1)
    a(f"v_sub_f32 {v(vG1)}, 1.0, {v(vG1)}\nv_cvt_pk_bf16_f32 {v(vG1)}, {v(vG1)}, {v(vG1)}\nv_and_b32 {v(vG1)}, 0xffff0000, {v(vG1)}")
    PF2 = P.get("PF2", 0)
    prio(PF2)
    w_pull(0, WB, ("t", 0))
    adds = {8: None, 22: 34, 32: 43}
    upto = {8: 35, 22: 49, 32: 59}
    thr = 0; allowed = NSL
    for st in range(44):
        M = [f"v_mfma_f32_32x32x16_bf16 {v(AO+16*cu,16)}, {v(WB+8*(st&1)+4*cu,4)}, {v(HF+4*(st%DH),4)}, {v(AO+16*cu,16) if st else 0}" for cu in range(2)]
        a.wait(vm=("h", st), lg=("t", st))
        a(M[0])
        if st + 1 < 44: w_pull(st + 1, WB + 8*((st+1) & 1), ("t", st + 1))
        if st + 1 in adds:
            if adds[st+1]: a.wait(vm=("w", adds[st+1]))
            a.lds(f"ds_add_u32 {v(vL4)}, {v(vONE)} offset:{CB_}"); thr += 4
        if st in adds: a.lds(f"ds_read_b32 {v(vC)}, {v(vL4)} offset:{CB_}", "c")
        a(M[1])
        if st + DH < 44: h_issue(st + DH)
        if P.get("STAMP2") and st % 4 == 0 and st < 40: a(f"s_memtime s[{4+st//2}:{5+st//2}]")
        if st in adds:
            l0, l1 = a.newlabel("L_cs"), a.newlabel("L_cg")
            a("s_setprio 2"); a.wait(lg="c")
            a(f"v_cmp_gt_i32 vcc, {thr}, {v(vC)}\ns_cbranch_vccnz {l0}"); a.label(l1); a(f"s_setprio {PF2}")
            tail.append((l0, l1, thr)); allowed = upto[st]
        for _ in range(2 if (22 <= st < 26 or st + DH >= 44) else 1):
            if wn[0] < allowed: w_issue()
    assert wn[0] == 59, wn[0]
    if P.get("STAMP2"):
        a("s_setprio 3\ns_waitcnt lgkmcnt(0)")
        for k in range(10): a(f"v_writelane_b32 v{VST}, s{4+2*k}, {48+k}")
    stamp(7)
    prio(2)
    a.wait(vm=("w", 51))
    a(f"ds_add_u32 {v(vL4)}, {v(vONE)} offset:{CB_}"); thr += 4
    sOr = 86
    a(f"s_lshl_b32 {s(t0)}, {s(sTG)}, 16\ns_lshl_b32 {s(t1)}, {s(sW)}, 14\ns_add_u32 {s(t1)}, {s(t0)}, {s(t1)}")
    for i in range(4): a(f"s_add_u32 {s(sOr+i)}, {s(t1)}, {OBUF + i*4096}")
    a.c("out address: (64tg + 32t + n)*1024 + cg*128 + kh*64 + h*16")
    a(f"s_and_b32 {s(t1)}, {s(sW)}, 1\ns_lshl_b32 {s(t1)}, {s(t1)}, 15\ns_add_u32 {s(t0)}, {s(t0)}, {s(t1)}\ns_lshl_b32 {s(t1)}, {s(sCG)}, 7\ns_add_u32 {s(t0)}, {s(t0)}, {s(t1)}")
    a(f"s_lshr_b32 {s(t1)}, {s(sW)}, 1\ns_lshl_b32 {s(t1)}, {s(t1)}, 6\ns_add_u32 {s(t4)}, {s(t0)}, {s(t1)}")
    srd(a, rOUT, pOUT, 2048*1024)
    a(f"v_lshrrev_b32 v3, 5, v0\nv_lshlrev_b32 v3, 4, v3\nv_lshl_add_u32 v3, v14, 10, v3")
    a(f"s_mul_i32 {s(t0)}, {s(sW)}, 768\nv_add_u32 v14, {s(t0)}, {v(vL4)}")
    a(f"s_lshl_b32 {s(t0)}, {s(sW)}, 12\nv_add_u32 v4, {s(t0)}, {v(vL16)}\nv_xor_b32 v5, 0x2000, v4")
    for i in range(0, 32, 2): a(f"v_pk_mul_f32 {v(AO+i,2)}, {v(AO+i,2)}, v[12:13] op_sel:[0,1] op_sel_hi:[1,1]")
    lds_wait(vL4, CB_, thr, vC, 1)
    w_issue()
    for ci in range(8): w_pull(44 + ci, WOF + 8*ci, None)
    a.wait_all(lg=False)
    a(f"ds_add_u32 {v(vL4)}, {v(vONE)} offset:{CB_}"); thr += 4
    stamp(8)
    a.c("wait until the partner A wave is past its first o tile")
    spin_init(); a.label("L_r1wait")
    a(f"ds_read_b32 {v(vC)}, v14 offset:{L_+12*256}\ns_waitcnt lgkmcnt(0)\nv_cmp_eq_u32 vcc, -1, {v(vC)}")
    spin_back("L_r1wait", 2)
    stamp(9)
    def o_round(r, sleep):
        lbl = f"L_opoll{r}"
        spin_init(); a.label(lbl)
        for ci in range(8):
            a(f"buffer_load_dwordx4 {v(OF+4*ci,4)}, {v(vL16)}, {s(rWS,4)}, {s(sOr+ci//2)} offen offset:{(ci&1)*2048+r*1024} sc1")
        a("s_waitcnt vmcnt(5)")
        a(f"v_max3_u32 {v(vC)}, {v(OF)}, {v(OF+4)}, {v(OF+8)}\ns_waitcnt vmcnt(3)\nv_max3_u32 {v(vC)}, {v(vC)}, {v(OF+12)}, {v(OF+16)}")
        a(f"s_waitcnt vmcnt(1)\nv_max3_u32 {v(vC)}, {v(vC)}, {v(OF+20)}, {v(OF+24)}\ns_waitcnt vmcnt(0) lgkmcnt(0)\nv_max_u32 {v(vC)}, {v(vC)}, {v(OF+28)}")
        a(f"v_cmp_eq_u32 vcc, -1, {v(vC)}")
        spin_back(lbl, sleep)
    def o_mfma(r, cu, ci): a(f"v_mfma_f32_32x32x16_bf16 {v(AO+16*cu,16)}, {v(WOF+64*r+8*ci+4*cu,4)}, {v(OF+4*ci,4)}, {v(AO+16*cu,16)}")
    o_round(0, 4)
    lds_wait(vL4, CB_, thr, vC, 1)
    prio(0)
    for ci in range(8):
        for cu in range(2):
            o_mfma(0, cu, ci); w_pull(52 + ci, WOF + 64 + 8*ci, None, (cu,))
    stamp(10)
    prio(2)
    a("s_barrier")
    stamp(11)
    o_round(1, None)
    a.c("the other column half goes to the partner wave through LDS")
    for ci in range(8): o_mfma(1, 1, ci)
    for ci in range(4): o_mfma(1, 0, ci)
    a("s_nop 7")
    for q in range(4):
        a(f"ds_write_b128 v5, {v(AO+16+4*q,4)} offset:{O1_+q*1024}"); o_mfma(1, 0, 4 + q)
    a("s_waitcnt lgkmcnt(0)\ns_barrier")
    for q in range(4): a(f"ds_read_b128 {v(AO+16+4*q,4)}, v4 offset:{O1_+q*1024}")
    a("s_nop 5")
    for hf in range(2):
        a(f"s_waitcnt lgkmcnt({2-2*hf})")
        for i in range(8*hf, 8*hf+8, 2): a(f"v_pk_add_f32 {v(AO+i,2)}, {v(AO+i,2)}, {v(AO+16+i,2)}")
        for i in range(4*hf, 4*hf+4): a(f"v_cvt_pk_bf16_f32 {v(RT+i)}, {v(AO+2*i)}, {v(AO+2*i+1)}")
        a(f"buffer_store_dwordx4 {v(RT+4*hf,4)}, v3, {s(rOUT,4)}, {s(t4)} offen offset:{32*hf} {P.get('OUTMOD','')}")
    stamp(12); stamp_out()
    if P.get("DIAG"):
        if P.get("DIAGA"): a("s_endpgm"); a.label("L_hold")
        a(f"s_waitcnt lgkmcnt(0)\ns_sub_u32 s94, s94, s92\ns_mul_i32 s94, s94, {P.get('DIAGK',0)}\ns_add_u32 s94, s94, {P['DIAG']}")
        a("L_diag:\ns_memrealtime s[90:91]\ns_waitcnt lgkmcnt(0)\ns_sub_u32 s90, s90, s92\ns_cmp_lt_u32 s90, s94\ns_cbranch_scc1 L_diag")
    a.label("L_end")
    a.label("L_last")
    a("s_endpgm")
    for l0, l1, th in tail:
        a.label(l0); lds_wait(vL4, CB_, th, vC, 1); a(f"s_branch {l1}")
    for r in range(2): slow_path(f"L_slow{r}", f"L_back{r}", O + 64*r + 48, QF + 16*r + 12, O + 64*r)

    ref = open("cdna_kernels/" + NAME + ".s.ref").read().split("\n")
    head = [l for l in ref if l.startswith(";") and "@launch" not in l and "Override" not in l and "grid=ceil" not in l]
    out = "\n".join(head) + f"\n; @launch grid=(256,1,1) block=(512,1,1) lds={LDS_BYTES}\n"
    out += f""".amdgcn_target "amdgcn-amd-amdhsa--gfx950"
.text
.globl {NAME}_kernel
.p2align 8
.type {NAME}_kernel,@function
{NAME}_kernel:
"""
    out += a.text()
    out += f""".section .rodata,"a"
.p2align 6
.amdhsa_kernel {NAME}_kernel
  .amdhsa_next_free_vgpr 256
  .amdhsa_next_free_sgpr 102
  .amdhsa_accum_offset 256
  .amdhsa_group_segment_fixed_size 0
  .amdhsa_kernarg_size 104
  .amdhsa_user_sgpr_count 2
  .amdhsa_user_sgpr_kernarg_segment_ptr 1
  .amdhsa_system_sgpr_workgroup_id_x 1
  .amdhsa_float_denorm_mode_32 3
.end_amdhsa_kernel
"""
    errs = check_hazards(a.text())
    for e in errs: print("HAZARD need %d have %d:\n   %d: %s\n   %d: %s" % (e[2], e[3], e[0], e[4], e[1], e[5]), file=sys.stderr)
    return out, errs

if __name__ == "__main__":
    kw = {}
    path = "cdna_kernels/" + NAME + ".s"
    for arg in sys.argv[1:]:
        if "=" in arg:
            k, val = arg.split("=", 1)
            kw[k] = int(val) if val.lstrip("-").isdigit() else val
        else: path = arg
    out, errs = gen(**kw)
    open(path, "w").write(out)
    print("wrote", path, len(out.split("\n")), "lines;", len(errs), "hazards")
```

```python
import sys, struct, math
from asmlib import Asm, v, s, check_hazards

NAME = "gated_mix__grouped_kv_mqa__glu_gated_swiglu__prompt"
def f32(x): return "0x%08x" % struct.unpack("<I", struct.pack("<f", x))[0]
LOG2E = math.log2(math.e)

DEFAULT = dict(NPF=0, DH=8, ROTM=5, HOLD=0, PFW=0, LOC=0, WB=0, STAMP=0, MAP="tok", FORCE_SLOW=0, LO=-40, HI=60, SPIN=200000, CPF=1, TLB=1, TLBN=32, TLBL="0x48c9a761")

O1_, L_, GW_, G_, CA_, CB_, X_, RING_ = 0, 24832, 30976, 32000, 32256, 32512, 32768, 98304
O2_, SB_ = X_, X_ + 24576
QG = 7168
LDS_BYTES = 163840
W3OFF, W3OFF0 = 3200, 12416
SLOTOFF = (8192, 0)
FKV, FH, KV, OBUF, HBUF, STAMPS = 0x1000, 0x2000, 0x10000, 0x40000, 0x240000, 0xA00000
JS = 44*1024
WS_BYTES = 0xB00000
IDX = 0xDDDDDDDD
pX, pWQ, pWK, pWV, pWO, pW1, pW3, pW2, pGW, pOUT, pDBG, pWS = 4, 6, 8, 10, 12, 16, 18, 20, 22, 24, 26, 28
sTAG, sSPIN = 30, 31
rX, rA, rB, rWS, rH, rW2, rWO, rOUT, rDBG = 32, 36, 40, 44, 48, 52, 56, 60, 64
sTG, sCG, sROT, sW, sWV = 68, 69, 70, 71, 72
t0, t1, t2, t3, t4, t5, sJS = 73, 74, 75, 76, 77, 78, 79
sPH, sQo, sQm, rQ = 88, 89, 31, 56
sC0 = 96
VST = 15

def srd(a, r, p, nbytes, off=None):
    if off is None:
        a(f"s_mov_b32 {s(r)}, {s(p)}\ns_mov_b32 {s(r+1)}, {s(p+1)}")
    else:
        a(f"s_add_u32 {s(r)}, {s(p)}, {off}\ns_addc_u32 {s(r+1)}, {s(p+1)}, 0")
    a(f"s_mov_b32 {s(r+2)}, {nbytes}\ns_mov_b32 {s(r+3)}, 0x20000")

def gen(**kw):
    P = dict(DEFAULT); P.update(kw)
    a = Asm()
    cur = {"prio": 0}
    LOC = P["LOC"]
    def xstore(kind, data, addr, rg, rl, soff, on, tag=None):
        a.vmem(f"buffer_store_{kind} {data}, {addr.split()[0]}, {s(rg,4)}, {soff} {' '.join(addr.split()[1:])} sc1", tag)
        if on: a.vmem(f"buffer_store_{kind} {data}, {addr.split()[0]}, {s(rl,4)}, {soff} {' '.join(addr.split()[1:])}", tag)
    def loc_load(dst, tmp):
        a(f"v_and_b32 {v(tmp)}, 7, v0\nv_lshlrev_b32 {v(tmp)}, 3, {v(tmp)}\ns_lshl_b32 {s(t0)}, {s(sTG)}, 7\ns_add_u32 {s(t0)}, {s(t0)}, {FKV}")
        a(f"buffer_load_dwordx2 {v(dst,2)}, {v(tmp)}, {s(rWS,4)}, {s(t0)} offen sc1")
    def loc_eval(src):
        a.c("scc = all eight workgroups of this token group run on this XCD")
        a(f"s_getreg_b32 {s(sTAG+1)}, hwreg(HW_REG_XCC_ID, 0, 4)\nv_cmp_ne_u64 vcc, {s(sTAG,2)}, {v(src,2)}\ns_cmp_eq_u64 vcc, 0")
    tail = []
    def prio(p): cur["prio"] = p; a(f"s_setprio {p}")
    def stamp(k):
        if P.get("DIAG") and k == P.get("DIAGM", 0):
            a("s_memrealtime s[94:95]"); a.wait_all(vm=False)
        if P["STAMP"]:
            a("s_memrealtime s[100:101]\ns_memtime s[14:15]\ns_setprio 3"); a.wait_all(vm=False)
            a(f"v_writelane_b32 v{VST}, s100, {k}\nv_writelane_b32 v{VST}, s14, {k+16}\ns_setprio {cur['prio']}")
    def cyc(k):
        if P["STAMP"]:
            a("s_memtime s[100:101]\ns_setprio 3"); a.wait_all(vm=False)
            a(f"v_writelane_b32 v{VST}, s100, {k}\ns_setprio {cur['prio']}")
    def stamp_out():
        if P["STAMP"]:
            cyc(15)
            a(f"s_lshl_b32 {s(t0)}, s2, 3\ns_add_u32 {s(t0)}, {s(t0)}, {s(sWV)}\ns_lshl_b32 {s(t0)}, {s(t0)}, 8\ns_add_u32 {s(t0)}, {s(t0)}, {STAMPS}")
            a(f"v_lshlrev_b32 v8, 2, v0\nbuffer_store_dword v{VST}, v8, {s(rWS,4)}, {s(t0)} offen")
    def dma(voff, r, soff, tag=None, mod="", pol=""):
        a.vmem(f"buffer_load_dwordx4 {v(voff)}, {s(r,4)}, {soff} offen {mod}{pol}lds", tag)
    NT = lambda k: "nt " if k in P.get("NT", "") else ""
    def spin_init(): a(f"s_mov_b32 {s(sSPIN)}, {P['SPIN']}")
    def spin_back(lbl, sleep=None):
        out = a.newlabel("L_ok")
        a(f"s_cbranch_vccz {out}")
        if sleep: a(f"s_sleep {sleep}")
        a(f"s_sub_u32 {s(sSPIN)}, {s(sSPIN)}, 1\ns_cmp_lg_u32 {s(sSPIN)}, 0\ns_cbranch_scc1 {lbl}")
        a.label(out)
    def lds_wait(addr, off, count, tmp, sleep=None):
        lbl = a.newlabel("L_lw"); spin_init(); a.label(lbl)
        a(f"ds_read_b32 {v(tmp)}, {v(addr)} offset:{off}"); a.wait_all(vm=False)
        a(f"v_cmp_gt_i32 vcc, {count}, {v(tmp)}")
        spin_back(lbl, sleep)
    def tag_from_epoch():
        a(f"s_mul_i32 {s(sTAG)}, {s(sTAG)}, 0x9E3779B1\ns_add_u32 {s(sTAG)}, {s(sTAG)}, 0x7F4A7C15")
    def x16_addr(dst, tmp):
        a.c("x fragment address (16x16x32 operand): n*128 + ((G ^ (n>>1))*16)")
        a(f"v_and_b32 {v(tmp)}, 15, v0\nv_lshrrev_b32 {v(dst)}, 1, {v(tmp)}\nv_lshrrev_b32 {v(tmp+1)}, 4, v0\nv_xor_b32 {v(dst)}, {v(dst)}, {v(tmp+1)}")
        a(f"v_lshlrev_b32 {v(dst)}, 4, {v(dst)}\nv_lshl_add_u32 {v(dst)}, {v(tmp)}, 7, {v(dst)}")
    def x32_addr(dst, tmp, base):
        a.c("x fragment address (32x32x16 operand), four k-steps of a 64-wide block")
        a(f"v_and_b32 {v(dst)}, 31, v0\nv_bfe_u32 {v(tmp)}, v0, 1, 3\nv_lshrrev_b32 {v(tmp+1)}, 5, v0\nv_xor_b32 {v(tmp)}, {v(tmp)}, {v(tmp+1)}")
        a(f"v_lshlrev_b32 {v(tmp)}, 4, {v(tmp)}\nv_lshl_add_u32 {v(dst)}, {v(dst)}, 7, {v(tmp)}\nv_add_u32 {v(dst)}, {base}, {v(dst)}")
        for j in range(1, 4): a(f"v_xor_b32 {v(dst+j)}, {32*j}, {v(dst)}")
    def obuf_soff(dst):
        a.c("o tile address: OBUF + tg*64K + w*16K + 2cg*1K")
        a(f"s_lshl_b32 {s(dst)}, {s(sTG)}, 2\ns_add_u32 {s(dst)}, {s(dst)}, {s(sW)}\ns_lshl_b32 {s(dst)}, {s(dst)}, 3\ns_add_u32 {s(dst)}, {s(dst)}, {s(sCG)}\ns_lshl_b32 {s(dst)}, {s(dst)}, 11\ns_add_u32 {s(dst)}, {s(dst)}, {OBUF}")

    if P.get("DIAG"): a("s_memrealtime s[92:93]\ns_memrealtime s[94:95]")
    a("s_cmp_ge_u32 s2, 256\ns_cbranch_scc1 L_end")
    a("s_load_dwordx16 s[4:19], s[0:1], 0\ns_load_dwordx8 s[20:27], s[0:1], 64\ns_load_dwordx2 s[28:29], s[0:1], 96")
    a("v_lshrrev_b32 v1, 6, v0")
    if P["CPF"]:
        a.c("pull this kernel's code into L2 (read only): one line per wave")
        a(f"s_getpc_b64 {s(t1,2)}\ns_lshr_b32 {s(t0)}, s2, 3\ns_lshl_b32 {s(t0)}, {s(t0)}, 10")
        a(f"v_lshl_add_u32 v16, v1, 7, {s(t0)}\nv_min_u32 v16, L_last-{NAME}_kernel-64, v16")
        a(f"v_mov_b32 v17, {s(t2)}\nv_add_co_u32 v16, vcc, {s(t1)}, v16\ns_nop 1\nv_addc_co_u32 v17, vcc, 0, v17, vcc")
        a("global_load_dword v127, v[16:17], off")
    a(f"v_and_b32 v0, 63, v0\nv_readfirstlane_b32 {s(sWV)}, v1")
    if P["MAP"] == "tok":
        a(f"s_and_b32 {s(sTG)}, s2, 31\ns_lshr_b32 {s(sCG)}, s2, 5")
        a(f"s_lshr_b32 {s(t0)}, {s(sTG)}, 3\ns_lshl_b32 {s(t0)}, {s(t0)}, 1\ns_add_u32 {s(sROT)}, {s(t0)}, {s(sTG)}\ns_add_u32 {s(sROT)}, {s(sROT)}, {s(sCG)}")
    elif P["MAP"] == "col":
        a(f"s_and_b32 {s(sCG)}, s2, 7\ns_lshr_b32 {s(sTG)}, s2, 3\ns_add_u32 {s(sROT)}, {s(sTG)}, {s(sCG)}")
    elif P["MAP"] == "4x2":
        a(f"s_lshr_b32 {s(t0)}, s2, 6\ns_and_b32 {s(t1)}, s2, 4\ns_add_u32 {s(sCG)}, {s(t0)}, {s(t1)}")
        a(f"s_bfe_u32 {s(t2)}, s2, 0x30003\ns_lshl_b32 {s(t0)}, {s(t0)}, 1\ns_add_u32 {s(sROT)}, {s(t0)}, {s(t2)}")
        a(f"s_lshl_b32 {s(t0)}, {s(t2)}, 2\ns_and_b32 {s(t1)}, s2, 3\ns_add_u32 {s(sTG)}, {s(t0)}, {s(t1)}")
    elif P["MAP"] == "2x4":
        a(f"s_lshr_b32 {s(t0)}, s2, 7\ns_and_b32 {s(t1)}, s2, 6\ns_add_u32 {s(sCG)}, {s(t0)}, {s(t1)}")
        a(f"s_bfe_u32 {s(t2)}, s2, 0x40003\ns_lshl_b32 {s(t0)}, {s(t0)}, 2\ns_add_u32 {s(sROT)}, {s(t0)}, {s(t2)}\ns_lshr_b32 {s(t1)}, {s(sCG)}, 1\ns_add_u32 {s(sROT)}, {s(sROT)}, {s(t1)}")
        a(f"s_lshl_b32 {s(t0)}, {s(t2)}, 1\ns_and_b32 {s(t1)}, s2, 1\ns_add_u32 {s(sTG)}, {s(t0)}, {s(t1)}")
    if P["TLB"]:
        a(f"s_lshl_b32 {s(t0)}, {s(sWV)}, 2\ns_lshr_b32 {s(t0)}, {P['TLBL']}, {s(t0)}\ns_and_b32 {s(t0)}, {s(t0)}, 15\ns_lshl_b32 {s(t0)}, {s(t0)}, 3\ns_load_dwordx2 s[90:91], s[0:1], {s(t0)}")
    a(f"s_and_b32 {s(sPH)}, {s(sROT)}, {2 & ~P.get('ROTM', 7)}\ns_and_b32 {s(sROT)}, {s(sROT)}, {P.get('ROTM', 7)}\ns_and_b32 {s(sW)}, {s(sWV)}, 3\ns_and_b32 {s(sJS)}, {s(sCG)}, 3")
    vXs, vKs = 1, 3
    a.c("x tile source: row lane>>3, slot lane&7 holds chunk slot ^ ((token>>1)&7)")
    a("v_lshrrev_b32 v4, 3, v0\nv_and_b32 v5, 7, v0\nv_lshrrev_b32 v6, 4, v0\nv_xor_b32 v5, v5, v6\nv_lshlrev_b32 v5, 4, v5\nv_lshl_add_u32 v4, v4, 10, v5")
    a(f"s_lshl_b32 {s(t0)}, {s(sTG)}, 2\ns_add_u32 {s(t0)}, {s(t0)}, {s(sJS)}\ns_lshl_b32 {s(t0)}, {s(t0)}, 14\nv_add_u32 {v(vXs)}, {s(t0)}, v4\nv_xor_b32 {v(vXs+1)}, 0x2040, {v(vXs)}")
    a.c("32-byte-row source: slot rho=lane>>1 holds row rho ^ (4*((rho>>3)&1))")
    a(f"v_lshrrev_b32 v5, 1, v0\nv_and_b32 v5, 8, v5\nv_xor_b32 v5, v5, v0\nv_lshlrev_b32 {v(vKs)}, 4, v5")
    a(f"s_add_u32 {s(t0)}, {s(sWV)}, {s(sROT)}\ns_and_b32 {s(t0)}, {s(t0)}, 7\ns_lshl_b32 {s(t1)}, {s(t0)}, 7\ns_lshl_b32 {s(t2)}, {s(t0)}, 11")
    a(f"s_lshl_b32 {s(t3)}, {s(sWV)}, 2\ns_add_u32 {s(t3)}, {s(t3)}, {s(sJS)}\ns_lshl_b32 {s(t3)}, {s(t3)}, 11\ns_lshl_b32 {s(t4)}, {s(sWV)}, 11")
    if P["STAMP"]: a(f"v_mov_b32 v{VST}, 0")
    a(f"s_mov_b32 {s(rX+2)}, {2048*1024}\ns_mov_b32 {s(rX+3)}, 0x20000\ns_mov_b32 {s(rOUT+2)}, 16384\ns_mov_b32 {s(rOUT+3)}, 0x20000")
    a(f"s_add_u32 m0, {s(t3)}, {X_}\ns_cmp_ge_u32 {s(sCG)}, 4")
    a("s_waitcnt lgkmcnt(0)")
    stamp(0); cyc(14)
    a(f"s_mov_b32 {s(rX)}, {s(pX)}\ns_mov_b32 {s(rX+1)}, {s(pX+1)}")
    dma(vXs, rX, s(t1), pol=NT('x'))
    a(f"s_cselect_b32 {s(rOUT)}, {s(pWV)}, {s(pWK)}\ns_cselect_b32 {s(rOUT+1)}, {s(pWV+1)}, {s(pWK+1)}")
    a(f"s_add_u32 m0, {s(t3)}, {X_+1024}\ns_load_dword {s(sTAG)}, {s(pWS,2)}, 0")
    dma(vXs+1, rX, s(t1), pol=NT('x'))
    a(f"s_mov_b32 m0, {s(t4)}\ns_cmp_ge_u32 s2, {P['TLBN']}")
    dma(vKs, rOUT, s(t2)); dma(vKs, rOUT, s(t2), mod="offset:1024 ")
    if P["TLB"]:
        a.c("touch the other buffers once (one per wave) so that their address translations are fetched early")
        a("s_cbranch_scc1 L_notlb\ns_load_dword s3, s[90:91], 0")
        a.label("L_notlb")
    srd(a, rWS, pWS, WS_BYTES)
    srd(a, rQ, pWQ, 512*1024)
    vD = 37
    a.c("128-byte-row source (wq, w2, wo): slot holds chunk slot ^ (4*((row>>1)&1)); 8 rows per wave")
    a(f"v_lshrrev_b32 v16, 2, v0\nv_and_b32 v16, 4, v16\nv_and_b32 v17, 7, v0\nv_xor_b32 v16, v16, v17\nv_lshlrev_b32 v16, 4, v16\nv_lshrrev_b32 v17, 3, v0\nv_lshl_add_u32 v16, v17, 10, v16")
    a(f"s_lshl_b32 {s(t0)}, {s(sW)}, 6\ns_add_u32 {s(t0)}, {s(t0)}, {s(sCG)}\ns_lshl_b32 {s(t0)}, {s(t0)}, 7\nv_add_u32 {v(vD)}, {s(t0)}, v16")
    def wq_lds(kb): return RING_ + (kb & 3)*16384 + (kb >> 2)*8192
    def wq_start(pos):
        a(f"s_add_u32 {s(sQo)}, {s(sROT)}, {pos}\ns_and_b32 {s(sQo)}, {s(sQo)}, 7\ns_lshl_b32 {s(sQo)}, {s(sQo)}, 16")
        a(f"s_and_b32 {s(sQm)}, {pos}, 3\ns_lshl_b32 {s(sQm)}, {s(sQm)}, 4\ns_add_u32 {s(sQm)}, {s(sQm)}, {s(sW)}\ns_lshl_b32 {s(sQm)}, {s(sQm)}, 10")
    def wq_one(rel, i, vD=vD):
        a(f"s_add_u32 m0, {s(sQm)}, {wq_lds(rel) + 4096*i}")
        a(f"s_and_b32 {s(sQo)}, {s(sQo)}, 0x7ffff")
        dma(vD, rQ, s(sQo))
        a(f"s_add_u32 {s(sQo)}, {s(sQo)}, 0x8000")
    a(f"s_cmp_ge_u32 {s(sWV)}, 4\ns_cbranch_scc1 L_B")

    a.c("---------------- A waves: wq loads and set-up while the tiles are in flight")
    vIDX, vKo, vVo, vWO, vWL, vRO, vRL, vG, vFl, vL4 = 1, 2, 3, 4, 5, 6, 9, 12, 13, 14
    S0, S1, KVR, QF, O = 16, 32, 48, 96, 128
    sKVo, sOB, sM0 = 80, 81, 83
    vXa, vTq, vFl0 = 32, 36, 38
    a.c("remaining x rows: wave w loads block positions 2w, 2w+1 of the three other 16-token groups")
    vXq, sXm, sXo = 96, 84, 87
    for j in range(3):
        a(f"v_xor_b32 {v(vXq+2*j)}, {(j+1)<<14}, {v(vXs)}\nv_xor_b32 {v(vXq+2*j+1)}, {(j+1)<<14}, {v(vXs+1)}")
        a(f"s_xor_b32 {s(t0)}, {s(sJS)}, {j+1}\ns_lshl3_add_u32 {s(t0)}, {s(sW)}, {s(t0)}\ns_lshl_b32 {s(sXm+j)}, {s(t0)}, 11")
    a(f"s_lshl1_add_u32 {s(sXo)}, {s(sW)}, {s(sROT)}\ns_lshl_b32 {s(sXo)}, {s(sXo)}, 7\ns_lshl_b32 {s(sM0)}, {s(sW)}, 10")
    wq_start(s(sPH))
    def a_group(g):
        kk, i = g >> 1, g & 1
        wq_one(kk, i)
        for j in range(3):
            a(f"s_add_u32 m0, {s(sXm+j)}, {X_+kk*8192+i*1024}")
            a(f"s_and_b32 {s(sXo)}, {s(sXo)}, 0x3ff" if j == 0 else "s_nop 0")
            dma(vXq+2*j+i, rX, s(sXo))
        if i: a(f"s_add_u32 {s(sXo)}, {s(sXo)}, 128")
    a(f"s_and_b32 {s(t0)}, {s(sW)}, 1\ns_lshl_b32 {s(t0)}, {s(t0)}, 12\ns_add_u32 {s(t0)}, {s(t0)}, {X_}")
    x32_addr(vXa, 16, s(t0))
    a.c("wq transpose-read: row 8h+r, chunk 4u+2grp+(c&1), sub c>>1")
    a(f"v_lshrrev_b32 v16, 5, v0\nv_bfe_u32 v17, v0, 2, 2\nv_lshl_add_u32 v16, v16, 3, v17\nv_lshlrev_b32 v16, 7, v16")
    a(f"v_bfe_u32 v17, v0, 4, 1\nv_lshl_add_u32 v16, v17, 5, v16\nv_and_b32 v17, 1, v0\nv_lshl_add_u32 v16, v17, 4, v16\nv_and_b32 v17, 2, v0\nv_lshl_add_u32 v16, v17, 2, v16")
    a(f"v_and_b32 v17, 8, v0\nv_lshl_add_u32 v16, v17, 3, v16\ns_lshr_b32 {s(t0)}, {s(sW)}, 1\ns_lshl_b32 {s(t0)}, {s(t0)}, 6\nv_xor_b32 v16, {s(t0)}, v16\nv_add_u32 {v(vTq)}, {RING_}, v16")
    a(f"v_mov_b32 {v(vIDX)}, {hex(IDX)}\nv_lshlrev_b32 {v(vL4)}, 2, v0\nv_lshlrev_b32 v16, 4, v0")
    a(f"s_lshl_b32 {s(t0)}, {s(sW)}, 15\ns_add_u32 {s(t0)}, {s(t0)}, {KV}\nv_add_u32 {v(vKo)}, {s(t0)}, v16")
    a(f"v_and_b32 v17, 15, v0\nv_lshlrev_b32 v17, 4, v17\nv_lshrrev_b32 v18, 5, v0\nv_lshl_add_u32 v17, v18, 8, v17\nv_add_u32 {v(vVo)}, {s(t0)}, v17")
    a(f"s_mul_i32 {s(t0)}, {s(sW)}, 6144\nv_add_u32 {v(vWO)}, {s(t0)}, v16\ns_mul_i32 {s(t0)}, {s(sW)}, 768\nv_add_u32 {v(vWL)}, {s(t0)}, {v(vL4)}")
    for i in range(3):
        a(f"s_add_u32 {s(t0)}, {s(sW)}, {3-i}\ns_and_b32 {s(t0)}, {s(t0)}, 3\ns_mul_i32 {s(t0)}, {s(t0)}, 3\ns_add_u32 {s(t0)}, {s(t0)}, {i}")
        a(f"s_lshl_b32 {s(t1)}, {s(t0)}, 11\nv_add_u32 {v(vRO+i)}, {s(t1)}, v16\ns_lshl_b32 {s(t1)}, {s(t0)}, 8\nv_add_u32 {v(vRL+i)}, {s(t1)}, {v(vL4)}")
    a(f"s_lshl_b32 {s(t0)}, {s(sW)}, 14\ns_add_u32 {s(t0)}, {s(t0)}, {RING_+QG}\nv_add_u32 v39, {s(t0)}, v16")
    for i in range(4):
        a(f"s_add_u32 {s(t0)}, {s(sW)}, {i+1}\ns_and_b32 {s(t1)}, {s(t0)}, 1\ns_lshl_b32 {s(t1)}, {s(t1)}, 14\ns_and_b32 {s(t0)}, {s(t0)}, 2\ns_lshl_b32 {s(t0)}, {s(t0)}, 12")
        a(f"s_add_u32 {s(t0)}, {s(t0)}, {s(t1)}\ns_add_u32 {s(t0)}, {s(t0)}, {RING_+QG}\nv_add_u32 {v(KVR+36+i)}, {s(t0)}, v16")
    obuf_soff(sOB)
    a(f"s_mul_i32 {s(t0)}, {s(sW)}, 6144\ns_sub_u32 {s(sOB)}, {s(sOB)}, {s(t0)}")
    a.c("keys start with the token group that shares this workgroup's residue mod 8")
    a(f"s_and_b32 {s(t5)}, {s(sTG)}, 7\ns_lshl_b32 {s(sKVo)}, {s(t5)}, 12\ns_lshl_b32 {s(t5)}, {s(t5)}, 7")
    a(f"s_mov_b32 {s(sC0)}, 0xffff\ns_mov_b32 {s(sC0+1)}, 0xffff\ns_mov_b32 {s(sC0+2)}, {f32(0.25*LOG2E)}\ns_mov_b32 {s(sC0+3)}, {f32(0.25*LOG2E)}")
    a(f"s_and_b32 {s(t0)}, {s(sW)}, 1\ns_lshl_b32 {s(t0)}, {s(t0)}, 7\nv_and_b32 {v(vG)}, 31, v0\nv_lshl_add_u32 {v(vG)}, {v(vG)}, 2, {s(t0)}")
    a(f"v_lshrrev_b32 {v(vFl)}, 3, v0\nv_and_b32 v17, 7, v0\nv_lshlrev_b32 v17, 3, v17\nv_lshl_add_u32 {v(vFl)}, {v(vFl)}, 7, v17\nv_add_u32 {v(vFl0)}, {s(t5)}, v17\ns_add_u32 {s(t3)}, {s(sM0)}, {FKV}")
    a("v_mov_b32 v17, -1")
    for r in range(2):
        for i in range(3): a(f"ds_write_b32 {v(vWL)}, v17 offset:{L_+(12*r+i)*256}")
    a.c("V operand padding rows: ones in rows 16 and 20 (row sums), zero elsewhere")
    a(f"v_and_b32 v19, 27, v0\nv_cmp_eq_u32 vcc, 16, v19\nv_mov_b32 v18, 0x3f803f80\ns_nop 0\nv_cndmask_b32 v19, 0, v18, vcc")
    for sl in range(4):
        for i in range(8): a(f"v_mov_b32 {v(KVR+12*sl+4+i)}, v19")
    for i in range(8): a(f"v_mov_b32 {v(S1+8+i)}, 0")
    for c in range(8): a(f"v_mfma_f32_32x32x8bf16_1k {v(O+16*c,16)}, {v(S1+8,2)}, {v(S1+8,2)}, 0")
    NQ0 = P.get("NQ0", 1)
    for g in range(NQ0): a_group(g)
    a(f"s_waitcnt vmcnt({4*NQ0}) lgkmcnt(0)\ns_barrier")
    cyc(32)
    for g in range(NQ0, 4): a_group(g)
    tag_from_epoch()
    a("s_waitcnt vmcnt(0)")
    cyc(33)
    a("s_barrier")
    stamp(1)
    a.reset()
    QA = 16
    def q_read(ks):
        st = QF + 8*(ks % 4); kb, j = ks >> 2, ks & 3
        a.lds(f"ds_read_b128 {v(st,4)}, {v(vXa+j)} offset:{kb*8192}", ("f", ks))
        for rd in range(2):
            a.lds(f"ds_read_b64_tr_b16 {v(st+4+2*rd,2)}, {v(vTq)} offset:{wq_lds(kb)-RING_ + j*2048 + rd*512}", ("f", ks))
    def q_mfma(ks):
        st = QF + 8*(ks % 4)
        a.wait(lg=("f", ks))
        a(f"v_mfma_f32_32x32x16_bf16 {v(QA,16)}, {v(st+4,4)}, {v(st,4)}, {v(QA,16) if ks else 0}")
    for ks in range(3): q_read(ks)
    for ks in range(32):
        if ks + 3 == 16: a.wait_all(vm=False); a("s_barrier")
        if ks == P.get("POLLK", 29): a(f"buffer_load_dword {v(vD)}, {v(vFl0)}, {s(rWS,4)}, {s(t3)} offen sc1")
        if ks + 3 < 32: q_read(ks + 3)
        if ks + 3 == 32:
            a.wait_all(vm=False); a("s_barrier")
        q_mfma(ks)
    stamp(2)
    a("v_mov_b32 v32, 1\ns_nop 10")
    for k in range(0, 16, 2): a(f"v_pk_mul_f32 {v(QA+k,2)}, {v(QA+k,2)}, {s(sC0+2,2)}")
    for k in range(8): a(f"v_cvt_pk_bf16_f32 {v(QA+k)}, {v(QA+2*k)}, {v(QA+2*k+1)}")
    a(f"ds_write_b128 v39, {v(QA,4)}\nds_write_b128 v39, {v(QA+4,4)} offset:8192")
    stamp(3)
    spin_init(); a("s_branch L_kvchk"); a.label("L_kvpoll")
    a(f"buffer_load_dword {v(vD)}, {v(vFl0)}, {s(rWS,4)}, {s(t3)} offen sc1")
    a.label("L_kvchk")
    a(f"s_waitcnt vmcnt(0)\nv_cmp_ne_u32 vcc, {s(sTAG)}, {v(vD)}")
    spin_back("L_kvpoll")
    stamp(4)
    def kv_load(sl):
        a(f"buffer_load_dwordx4 {v(KVR+12*sl,4)}, {v(vKo)}, {s(rWS,4)}, {s(sKVo)} offen sc1")
        a(f"s_mov_b64 exec, {s(sC0,2)}")
        a(f"buffer_load_dwordx4 {v(KVR+12*sl+4,4)}, {v(vVo)}, {s(rWS,4)}, {s(sKVo)} offen offset:1024 sc1")
        a(f"buffer_load_dwordx4 {v(KVR+12*sl+8,4)}, {v(vVo)}, {s(rWS,4)}, {s(sKVo)} offen offset:1536 sc1")
        a(f"s_mov_b64 exec, -1\ns_add_u32 {s(sKVo)}, {s(sKVo)}, 2048\ns_and_b32 {s(sKVo)}, {s(sKVo)}, 0x7fff")
    if LOC: loc_load(KVR+24, KVR+26)
    for sl in range(2): kv_load(sl)
    a(f"ds_add_u32 {v(vL4)}, v32 offset:{CA_}")
    lds_wait(vL4, CA_, 4, 25)
    for i in range(4):
        a(f"ds_read_b128 {v(QF+4*i,4)}, {v(KVR+36+i)}\nds_read_b128 {v(QF+16+4*i,4)}, {v(KVR+36+i)} offset:32768")
    prio(1)
    QK = lambda dst, c, k: f"v_mfma_f32_32x32x16_bf16 {v(dst,16)}, {v(KVR+12*k,4)}, {v(QF+4*c,4)}, 0"
    PV0 = lambda src, c, k: f"v_smfmac_f32_32x32x32_bf16 {v(O+16*c,16)}, {v(KVR+12*k+4,4)}, {v(src,8)}, {v(vIDX)}"
    PV1 = lambda src, c, k: f"v_smfmac_f32_32x32x32_bf16 {v(O+16*c,16)}, {v(KVR+12*k+8,4)}, {v(src+8,8)}, {v(vIDX)}"
    p1, pq, p0 = P.get("P1", 2), P.get("PQ", 5), P.get("P0", 10)
    def tile(n, prev, cur_, nxt, ev):
        cb, ob = (S0, S1) if n % 2 == 0 else (S1, S0)
        for k in range(16):
            for f in ev.get(k, []): f()
            if k == p1: a(PV1(ob, *prev))
            if k == pq and nxt: a(QK(ob, *nxt))
            if k == p0: a(PV0(cb, *cur_))
            a(f"v_exp_f32 {v(cb+k)}, {v(cb+k)}")
    def flush(c):
        r, i = c >> 2, c & 3
        ob = (O1_, O2_)[r] + i*2048
        a(f"ds_write_b128 {v(vWO)}, {v(O+16*c,4)} offset:{ob}\nds_write_b128 {v(vWO)}, {v(O+16*c+4,4)} offset:{ob+1024}")
        a(f"ds_write_b32 {v(vWL)}, {v(O+16*c+8)} offset:{L_+(12*r+i)*256}")
    def gather(r):
        T = O + 64*r
        for i in range(3): a(f"ds_read_b32 {v(T+16*i+8)}, {v(vRL+i)} offset:{L_+12*r*256}")
        for i in range(3):
            for hf in range(2): a(f"ds_read_b128 {v(T+16*i+4*hf,4)}, {v(vRO+i)} offset:{(O1_, O2_)[r]+hf*1024}")
    def gcheck(r):
        T = O + 64*r
        a(f"s_waitcnt lgkmcnt(0)\nv_max3_u32 {v(T+10)}, {v(T+8)}, {v(T+24)}, {v(T+40)}\nv_cmp_eq_u32 vcc, -1, {v(T+10)}")
    def acc9(d, x):
        for i in range(0, 8, 2): a(f"v_pk_add_f32 {v(d+i,2)}, {v(d+i,2)}, {v(x+i,2)}")
        a(f"v_add_f32 {v(d+8)}, {v(d+8)}, {v(x+8)}")
    def finish(r):
        T = O + 64*r; W = T + 48
        gcheck(r)
        a(f"s_cbranch_vccnz L_retry{r}"); a.label(f"L_got{r}")
        acc9(T, T+16); acc9(T, T+32); acc9(W, T)
        lo = (127 + P["LO"]) << 23; hi = (127 + P["HI"]) << 23
        a.c("row sums outside the safe range: redo this tile with the true row maximum")
        a(f"v_subrev_u32 {v(T)}, {hex(lo)}, {v(W+8)}\nv_cmp_le_u32 vcc, {hex(0 if P['FORCE_SLOW'] else hi-lo)}, {v(T)}")
        a(f"s_cbranch_vccnz L_slow{r}"); a.label(f"L_back{r}")
        a(f"v_rcp_f32 {v(T)}, {v(W+8)}\ns_nop 0\nv_mul_f32 {v(T)}, {v(T)}, {v(vVo)}")
        for i in range(0, 8, 2): a(f"v_pk_mul_f32 {v(W+i,2)}, {v(W+i,2)}, {v(T,2)} op_sel_hi:[1,0]")
        for i in range(4): a(f"v_cvt_pk_bf16_f32 {v(W+i)}, {v(W+2*i)}, {v(W+2*i+1)}")
        a(f"v_min_u32 {v(W)}, -2, {v(W)}")
        xstore("dwordx4", v(W,4), f"{v(vWO)} offen offset:{r*1024}", rG, rL, s(sOB), LOC)
    def b_read(): a(f"ds_read_b32 {v(vKo)}, {v(vL4)} offset:{CB_}\nds_read_b32 {v(vVo)}, {v(vG)} offset:{G_}")
    def b_check():
        a(f"s_waitcnt vmcnt(0) lgkmcnt(0)\nv_cmp_gt_i32 vcc, -4, {v(vKo)}\ns_cbranch_vccnz L_bretry"); a.label("L_bgot")
    a("s_waitcnt vmcnt(3) lgkmcnt(0)")
    if P.get("NOATT"): a("s_sleep 127\ns_sleep 127\ns_sleep 127")
    a(QK(S0, 0, 0))
    rG, rL = (rA, rB) if LOC else (rWS, rWS)
    if LOC:
        loc_eval(KVR+24)
        a(f"s_cselect_b32 {s(t1)}, 0, {WS_BYTES}\ns_cselect_b32 {s(t2)}, {WS_BYTES}, 0")
        srd(a, rG, pWS, s(t1)); srd(a, rL, pWS, s(t2))
        a(f"s_mov_b32 {s(t0)}, 2")
    else: a(f"s_mov_b32 {s(t0)}, 2\ns_nop 10")
    stamp(5)
    vP = KVR + 36
    def full_poll(): a(f"buffer_load_dword {v(vP)}, {v(vFl)}, {s(rWS,4)}, {s(t3)} offen sc1")
    def full_check():
        a(f"s_waitcnt vmcnt(0)\nv_cmp_ne_u32 vcc, {s(sTAG)}, {v(vP)}\ns_cbranch_vccnz L_fretry"); a.label("L_fgot")
        kv_load(2)
    def clears():
        a.c("clear this wave's two o tiles to the not-yet-written sentinel")
        for i in range(4): a(f"v_mov_b32 {v(KVR+12+i)}, -1")
        for r in range(2): xstore("dwordx4", v(KVR+12,4), f"{v(vWO)} offen offset:{r*1024}", rG, rL, s(sOB), LOC)
        a("s_nop 0")
    seq = [(c, k) for k in range(4) for c in range(8)]
    PP, PC = P.get("PP", 5), P.get("PC", 9)
    for n, cu in enumerate(seq):
        ev = {}
        if n == PP: ev[12] = [full_poll]
        if n == PC: ev[12] = [full_check]
        if n == PC + 2: ev[12] = [lambda: kv_load(3)]
        if n == PC + 4: ev[12] = [lambda: kv_load(0)]
        if n == 7: ev[pq] = [lambda: a("s_waitcnt vmcnt(1)")]
        if cu[0] == 0 and n >= 16: ev[12] = [lambda: kv_load((cu[1] + 3) % 4)]
        if n == 16: ev[12].insert(0, clears)
        if cu[0] == 7 and n > 7: ev[pq] = [lambda: a(f"s_waitcnt vmcnt({6 + ((4 if LOC else 2) if n == 23 else 0)})")]
        if n == 31: ev[pq].append(lambda: a(f"v_mov_b32 {v(vFl)}, 1\nds_add_u32 {v(vL4)}, {v(vFl)} offset:{CA_}"))
        tile(n, seq[n-1], cu, seq[(n+1) % 32], ev)
    a(".p2align 3")
    a.label("L_att")
    seq = [(c, k) for k in range(4) for c in range(8)]
    for n, cu in enumerate(seq):
        ev = {}
        if cu[0] == 0: ev[12] = [lambda: kv_load((cu[1] + 3) % 4)]
        if cu[0] == 7: ev[pq] = [lambda: a("s_waitcnt vmcnt(6)")]
        tile(n, seq[n-1], cu, seq[(n+1) % 32], ev)
    a(f"s_sub_u32 {s(t0)}, {s(t0)}, 1\ns_cmp_lg_u32 {s(t0)}, 0\ns_cbranch_scc1 L_att")
    stamp(6)
    seq = [(0,0),(0,1),(0,2),(1,0),(1,1),(1,2),(0,3),(1,3)] + [(c, k) for c in range(2, 8) for k in range(4)]
    for n, cu in enumerate(seq):
        ev = {}
        prev = seq[n-1] if n else (7, 3)
        if n == 0: ev[pq] = [lambda: a("s_waitcnt vmcnt(0)")]; ev[12] = [lambda: kv_load(3), b_read]
        if cu == (1, 2): ev[pq] = [b_check]
        if n and prev[1] == 3:
            ev[13] = [(lambda: finish(0)) if prev[0] == 3 else (lambda: flush(prev[0]))]
        if cu in ((3, 3), (7, 3)): ev[7] = [lambda: gather(cu[0] >> 2)]
        tile(n, prev, cu, seq[n+1] if n < 31 else None, ev)
    a("s_nop 1")
    a(PV1(S1, 7, 3))
    finish(1)
    stamp(7)
    a("s_barrier")
    stamp_out()
    if P.get("DIAGA"): a("s_barrier\ns_branch L_hold")
    a("s_endpgm")
    def a_tail():
        for r in range(2):
            a.label(f"L_retry{r}"); spin_init(); a.label(f"L_retryl{r}")
            gather(r); gcheck(r); spin_back(f"L_retryl{r}")
            a(f"s_branch L_got{r}")
        a.label("L_fretry"); spin_init(); a.label("L_fretryl")
        full_poll(); a(f"s_waitcnt vmcnt(0)\nv_cmp_ne_u32 vcc, {s(sTAG)}, {v(vP)}"); spin_back("L_fretryl")
        a("s_branch L_fgot")
        a.label("L_bretry"); spin_init(); a.label("L_bretryl")
        b_read(); a(f"s_waitcnt lgkmcnt(0)\nv_cmp_gt_i32 vcc, -4, {v(vKo)}"); spin_back("L_bretryl", 1)
        a("s_branch L_bgot")
    a_tail()

    def slow_path(lbl, back, T, Qf, R):
        Kf, V0, V1, S, M, vk, vv, tm = R, R+4, R+8, R+12, R+28, R+29, R+30, R+31
        a.label(lbl)
        a(f"v_lshlrev_b32 {v(vk)}, 4, v0\nv_lshrrev_b32 {v(vv)}, 5, v0\nv_lshlrev_b32 {v(vv)}, 8, {v(vv)}")
        a(f"v_and_b32 {v(tm)}, 15, v0\nv_lshl_add_u32 {v(vv)}, {v(tm)}, 4, {v(vv)}")
        a(f"v_mov_b32 {v(M)}, 0xff800000")
        for i in range(8): a(f"v_mov_b32 {v(V0+i)}, 0x3f803f80")
        for i in range(16): a(f"v_mov_b32 {v(T+i)}, 0")
        a(f"s_mov_b32 {s(t4)}, {KV}")
        l1 = a.newlabel("L_sm"); a.label(l1)
        a(f"buffer_load_dwordx4 {v(Kf,4)}, {v(vk)}, {s(rWS,4)}, {s(t4)} offen sc1\ns_waitcnt vmcnt(0)")
        a(f"v_mfma_f32_32x32x16_bf16 {v(S,16)}, {v(Kf,4)}, {v(Qf,4)}, 0\ns_nop 15")
        for i in range(8): a(f"v_max3_f32 {v(M)}, {v(M)}, {v(S+2*i)}, {v(S+2*i+1)}")
        a(f"s_add_u32 {s(t4)}, {s(t4)}, 2048\ns_cmp_lt_u32 {s(t4)}, {KV+64*2048}\ns_cbranch_scc1 {l1}")
        a(f"v_mov_b32 {v(tm)}, {v(M)}\ns_nop 1\nv_permlane32_swap_b32 {v(tm)}, {v(M)}\ns_nop 1\nv_max_f32 {v(M)}, {v(M)}, {v(tm)}")
        a(f"s_mov_b32 {s(t4)}, {KV}")
        l2 = a.newlabel("L_sp"); a.label(l2)
        a(f"buffer_load_dwordx4 {v(Kf,4)}, {v(vk)}, {s(rWS,4)}, {s(t4)} offen sc1")
        a(f"s_mov_b64 exec, {s(sC0,2)}")
        a(f"buffer_load_dwordx4 {v(V0,4)}, {v(vv)}, {s(rWS,4)}, {s(t4)} offen offset:1024 sc1")
        a(f"buffer_load_dwordx4 {v(V1,4)}, {v(vv)}, {s(rWS,4)}, {s(t4)} offen offset:1536 sc1")
        a("s_mov_b64 exec, -1\ns_waitcnt vmcnt(0)")
        a(f"v_mfma_f32_32x32x16_bf16 {v(S,16)}, {v(Kf,4)}, {v(Qf,4)}, 0\ns_nop 15")
        for i in range(16): a(f"v_sub_f32 {v(S+i)}, {v(S+i)}, {v(M)}")
        for i in range(16): a(f"v_exp_f32 {v(S+i)}, {v(S+i)}")
        a("s_nop 1")
        a(f"v_smfmac_f32_32x32x32_bf16 {v(T,16)}, {v(V0,4)}, {v(S,8)}, v1")
        a(f"v_smfmac_f32_32x32x32_bf16 {v(T,16)}, {v(V1,4)}, {v(S+8,8)}, v1")
        a(f"s_add_u32 {s(t4)}, {s(t4)}, 2048\ns_cmp_lt_u32 {s(t4)}, {KV+64*2048}\ns_cbranch_scc1 {l2}")
        a(f"s_nop 15\ns_branch {back}")

    a.label("L_B")
    a.reset(); cur["prio"] = 0
    vD2, vONE, vOUT, vXR, vXW, vT2, vL16, vL4, vC, vG1, vLa = 1, 2, 3, 4, 5, 6, 10, 11, 12, 13, 14
    ACC, WF, XB, TM = 16, 112, 160, 192
    vW, vTr, vTr0, vXb, vX16, vGa, vFl, vTAG, vM1, vPF = 208, 214, 215, 220, 226, 228, 230, 231, 232, 216
    sOr, sPf, sPo, sLOC = 36, 88, 89, 87
    sBLK, sU, sRING, sM0, sWg, sHg, sOB, sFh, sFo, sOOB = 81, 83, 80, 85, 84, 86, 87, 82, 3, 79
    NADD1 = 2
    a(f"v_lshlrev_b32 {v(vL16)}, 4, v0\nv_lshlrev_b32 {v(vL4)}, 2, v0")
    a(f"s_cmp_lg_u32 {s(sW)}, 3\ns_cbranch_scc1 L_B0")
    srd(a, rW2, pGW, 1024)
    a(f"s_lshl_b32 {s(t2)}, {s(sROT)}, 7\nv_add_u32 v16, {s(t2)}, {v(vL16)}\nv_and_b32 v16, 0x3ff, v16\ns_mov_b32 m0, {GW_}\nv_mov_b32 v17, 0\nv_mov_b32 v18, {-4*NADD1}")
    dma(16, rW2, "0")
    a(f"ds_write_b32 {v(vL4)}, v17 offset:{CA_}\nds_write_b32 {v(vL4)}, v18 offset:{CB_}")
    a.label("L_B0")
    x16_addr(vX16, 16)
    a(f"v_mov_b32 {v(vD2)}, {v(vD)}\ns_xor_b32 {s(sPH)}, {s(sPH)}, 2")
    def b_wq():
        wq_start(s(sPH))
        for g in range(4): wq_one(g >> 1, g & 1, vD2)
        wq_start(4)
        for g in range(8): wq_one(4 + (g >> 1), g & 1, vD2)
    def b_setup():
        a(f"s_lshl_b32 {s(sRING)}, {s(sW)}, 14\ns_add_u32 {s(sRING)}, {s(sRING)}, {RING_}")
        a(f"s_lshl_b32 {s(t0)}, {s(sCG)}, 2\ns_add_u32 {s(sU)}, {s(t0)}, {s(sW)}")
        a(f"s_cmp_gt_u32 {s(sU)}, 28\ns_cselect_b32 {s(t1)}, 0, {512*2752}")
        srd(a, rA, pW1, s(t1)); srd(a, rB, pW3, s(t1))
        a.c("w1 / w3 source: 32 rows of 96 bytes per block and wave")
        a(f"s_mul_i32 {s(t0)}, {s(sU)}, 96")
        for q in range(3):
            a(f"v_add_u32 v16, {64*q}, v0\nv_mul_u32_u24 v17, 10923, v16\nv_lshrrev_b32 v17, 16, v17\nv_mul_u32_u24 v18, 6, v17\nv_sub_u32 v18, v16, v18")
            a(f"v_mul_u32_u24 v17, 2752, v17\nv_lshl_add_u32 v17, v18, 4, v17\nv_add_u32 {v(vW+q)}, {s(t0)}, v17")
        a(f"s_mul_i32 {s(sBLK)}, {s(sROT)}, {64*2752}\ns_mul_i32 {s(t5)}, {s(sW)}, 3072")
        a.c("w1 / w3 transpose-read address: grp*w3 + (8h+r)*96 + c*8")
        a(f"v_lshrrev_b32 v16, 5, v0\nv_lshlrev_b32 v16, 3, v16\nv_bfe_u32 v17, v0, 2, 2\nv_add_u32 v16, v16, v17\nv_mul_u32_u24 v16, 96, v16")
        a(f"v_and_b32 v17, 3, v0\nv_lshl_add_u32 v16, v17, 3, v16\nv_bfe_u32 v17, v0, 4, 1\nv_mul_u32_u24 v18, {W3OFF}, v17\nv_mul_u32_u24 v17, {W3OFF0}, v17")
        a(f"v_add3_u32 {v(vTr)}, v16, v18, {s(sRING)}\nv_add3_u32 {v(vTr0)}, v16, v17, {s(t5)}")
        x32_addr(vXb, 16, X_)
    def b_setup1():
        a(f"s_lshl_b32 {s(t0)}, {s(sW)}, 11\ns_add_u32 {s(t0)}, {s(t0)}, {X_}\nv_add_u32 {v(vX16)}, {s(t0)}, {v(vX16)}\nv_xor_b32 {v(vX16+1)}, 64, {v(vX16)}\nv_and_b32 {v(vGa)}, 48, v0")
        a(f"s_lshl_b32 {s(t0)}, {s(sW)}, 6\nv_and_b32 v236, 15, v0\nv_lshl_add_u32 {v(vGa+1)}, v236, 2, {s(t0)}")
    def b_setup2():
        a.c("[w2; wo] transpose-read: row 16*kh + 4h + r, chunk 4cu + 2grp + (c&1), sub c>>1; local tile 0 is column half kh")
        a(f"v_lshrrev_b32 v238, 5, v0\nv_bfe_u32 v237, v0, 2, 2\nv_lshl_add_u32 v236, v238, 2, v237\nv_lshlrev_b32 v236, 7, v236")
        a(f"v_bfe_u32 v237, v0, 4, 1\nv_lshl_add_u32 v236, v237, 5, v236\nv_and_b32 v237, 1, v0\nv_lshl_add_u32 v236, v237, 4, v236")
        a(f"v_and_b32 v237, 2, v0\nv_lshl_add_u32 v236, v237, 2, v236\nv_and_b32 v237, 8, v0\nv_lshl_add_u32 v236, v237, 3, v236")
        a(f"s_lshr_b32 {s(t0)}, {s(sW)}, 1\ns_mul_i32 {s(t0)}, {s(t0)}, {2048+64}\nv_xor_b32 v236, {s(t0)}, v236")
        a(f"v_add_u32 {v(vT2)}, {SB_}, v236\nv_xor_b32 {v(vT2+1)}, 64, {v(vT2)}\nv_add_u32 {v(vT2+2)}, 0x10000, {v(vT2)}\nv_add_u32 {v(vT2+3)}, 0x10000, {v(vT2+1)}")
        a(f"v_bfe_u32 v236, v0, 2, 3\nv_and_b32 v237, 3, v0\nv_lshlrev_b32 v237, 2, v237\nv_lshl_add_u32 {v(vFl)}, v236, 7, v237")
        a(f"s_and_b32 {s(t0)}, {s(sW)}, 1\ns_lshl_b32 {s(t0)}, {s(t0)}, 7\nv_and_b32 v236, 31, v0\nv_lshl_add_u32 {v(vG1)}, v236, 2, {s(t0)}")
        a(f"v_lshlrev_b32 v238, 4, v238\nv_lshl_add_u32 {v(vOUT)}, v236, 10, v238\ns_mul_i32 {s(t0)}, {s(sW)}, 768\nv_add_u32 {v(vLa)}, {s(t0)}, {v(vL4)}")
        a(f"s_lshl_b32 {s(t0)}, {s(sW)}, 12\nv_add_u32 {v(vXR)}, {s(t0)}, {v(vL16)}\nv_xor_b32 {v(vXW)}, 0x2000, {v(vXR)}")
        a(f"v_mov_b32 {v(vONE)}, 1\nv_mov_b32 {v(vTAG)}, {s(sTAG)}")
        if P["PFW"]:
            a.c("L2 warm-up of this workgroup's share of the [w2; wo] column slice: one row per lane, 32 lanes")
            a(f"s_lshl_b32 {s(t0)}, {s(sCG)}, 7\nv_lshl_add_u32 v236, v0, 10, {s(t0)}\nv_and_b32 v237, 32, v0\nv_lshl_add_u32 {v(vPF)}, v237, 25, v236")
    def b_setup3():
        a(f"s_cmp_gt_u32 {s(sU)}, 28\ns_cselect_b32 {s(t2)}, 0, {4*JS}\ns_mul_i32 {s(t0)}, {s(sTG)}, {4*JS}\ns_add_u32 {s(t0)}, {s(t0)}, {HBUF}")
        srd(a, rH, pWS, s(t2), off=s(t0))
        if P["PFW"]:
            srd(a, rX, pW2, 1376*1024); srd(a, rWO, pWO, 512*1024)
            a(f"s_lshr_b32 {s(t0)}, {s(sTG)}, 3\ns_lshl2_add_u32 {s(t0)}, {s(t0)}, {s(sW)}\ns_mul_i32 {s(sPf)}, {s(t0)}, {86*1024}\ns_sub_u32 {s(sPf)}, {s(sPf)}, {4*32768}\ns_lshl_b32 {s(sPo)}, {s(t0)}, 15")
        a(f"s_mov_b32 {s(sC0)}, {f32(-LOG2E)}\ns_mov_b32 {s(sC0+1)}, {s(sC0)}\ns_mov_b32 {s(sC0+2)}, 1.0\ns_mov_b32 {s(sC0+3)}, 1.0")
    def b_setup4():
        srd(a, rW2, pW2, 1376*1024); srd(a, rWO, pWO, 512*1024)
        a(f"s_mul_i32 {s(t0)}, {s(sROT)}, 11\ns_lshr_b32 {s(t0)}, {s(t0)}, 3\ns_lshl_b32 {s(sWg)}, {s(t0)}, 17\ns_lshl_b32 {s(sHg)}, {s(t0)}, 12")
        a(f"s_lshl_b32 {s(sM0)}, {s(sW)}, 10\ns_add_u32 {s(sM0)}, {s(sM0)}, {SB_}")
    def b_setup5():
        a(f"s_lshl_b32 {s(t0)}, {s(sTG)}, 10\ns_add_u32 {s(sFh)}, {s(t0)}, {FH}\ns_lshl_b32 {s(t0)}, {s(sCG)}, 7\ns_lshl_b32 {s(t1)}, {s(sW)}, 2\ns_add_u32 {s(t0)}, {s(t0)}, {s(t1)}\ns_add_u32 {s(sFo)}, {s(t0)}, {s(sFh)}")
        a(f"s_mul_i32 {s(t1)}, {s(sW)}, {JS}")
        srd(a, rDBG, rH, 43*1024, off=s(t1))
        srd(a, rOUT, pOUT, 2048*1024)
        a(f"s_lshl_b32 {s(t0)}, {s(sTG)}, 16\ns_lshl_b32 {s(t1)}, {s(sW)}, 14\ns_add_u32 {s(t1)}, {s(t0)}, {s(t1)}")
        for i in range(4): a(f"s_add_u32 {s(sOr+i)}, {s(t1)}, {OBUF + i*4096}")
        a.c("out address: (64tg + 32t + n)*1024 + cg*128 + kh*64 + h*16")
        a(f"s_and_b32 {s(t1)}, {s(sW)}, 1\ns_lshl_b32 {s(t1)}, {s(t1)}, 15\ns_add_u32 {s(t0)}, {s(t0)}, {s(t1)}\ns_lshl_b32 {s(t1)}, {s(sCG)}, 7\ns_add_u32 {s(t0)}, {s(t0)}, {s(t1)}")
        a(f"s_lshr_b32 {s(t1)}, {s(sW)}, 1\ns_lshl_b32 {s(t1)}, {s(t1)}, 6\ns_add_u32 {s(t4)}, {s(t0)}, {s(t1)}")
    def w13_issue(base, off, part, soff, w3=W3OFF):
        a(f"s_add_u32 m0, {s(base)}, {off + (part//3)*w3 + (part%3)*1024}\ns_nop 0")
        a(f"buffer_load_dwordx4 {v(vW + part%3)}, {s(rA if part < 3 else rB,4)}, {s(soff)} offen lds")
    def blk_next():
        a(f"s_add_u32 {s(sBLK)}, {s(sBLK)}, {32*2752}\ns_cmp_eq_u32 {s(sBLK)}, {512*2752}\ns_cselect_b32 {s(sBLK)}, 0, {s(sBLK)}")
    def blk_issue(base, off, w3=W3OFF):
        for p in range(6): w13_issue(base, off, p, sBLK, w3)
        blk_next()
    HOLD = P["HOLD"]
    a(f"v_mov_b32 {v(TM)}, 0\nv_mov_b32 {v(TM+1)}, 0")
    b_setup()
    for i in range(6): a(f"v_mfma_f32_32x32x8bf16_1k {v(ACC+16*i,16)}, {v(TM,2)}, {v(TM,2)}, 0")
    a(f"s_cmp_eq_u32 {s(sW)}, 3\ns_cbranch_scc1 L_Bp")
    a("s_waitcnt vmcnt(0) lgkmcnt(0)\ns_barrier")
    tag_from_epoch()
    b_wq()
    a("s_waitcnt vmcnt(8)")
    cyc(41)
    a("s_barrier")
    if HOLD < 2: blk_issue(t5, 0, W3OFF0)
    a(f"s_waitcnt vmcnt({6 if HOLD < 2 else 0})")
    a("s_branch L_B1")

    a.label("L_Bp")
    a.c("wave 7: K (cg < 4) or V of this workgroup's 16-token group")
    pT, pX_, pA, KA, F = 240, 242, 244, 248, 112
    a.c("transpose-read address in a 32-byte-row image: ((8G+r) ^ (4*(G&1)))*32 + c*8")
    a(f"v_lshrrev_b32 v252, 4, v0\nv_lshlrev_b32 {v(pT)}, 8, v252\nv_and_b32 v252, 1, v252\nv_lshl_add_u32 {v(pT)}, v252, 7, {v(pT)}")
    a(f"v_and_b32 v252, 15, v0\nv_lshl_add_u32 {v(pT)}, v252, 3, {v(pT)}\nv_xor_b32 {v(pT+1)}, 128, {v(pT)}")
    a(f"s_lshl_b32 {s(t0)}, {s(sJS)}, 11\ns_add_u32 {s(t0)}, {s(t0)}, {X_}\nv_add_u32 {v(pX_)}, {s(t0)}, {v(vX16)}\nv_xor_b32 {v(pX_+1)}, 64, {v(pX_)}")
    a(f"s_lshr_b32 {s(t1)}, {s(sCG)}, 2\ns_sub_u32 {s(t0)}, 9, {s(t1)}\nv_lshrrev_b32 v253, 5, v0\nv_lshlrev_b32 v253, {s(t0)}, v253\nv_lshl_add_u32 {v(pA)}, v252, 4, v253")
    a(f"s_lshl_b32 {s(t4)}, {s(sTG)}, 1\ns_lshr_b32 {s(t0)}, {s(sJS)}, 1\ns_add_u32 {s(t4)}, {s(t4)}, {s(t0)}\ns_lshl_b32 {s(t4)}, {s(t4)}, 1\ns_add_u32 {s(t4)}, {s(t4)}, {s(t1)}\ns_lshl_b32 {s(t4)}, {s(t4)}, 10")
    a(f"s_and_b32 {s(t0)}, {s(sJS)}, 1\ns_add_u32 {s(t1)}, {s(t1)}, 8\ns_lshl_b32 {s(t0)}, {s(t0)}, {s(t1)}\ns_add_u32 {s(t4)}, {s(t4)}, {s(t0)}\ns_add_u32 {s(t4)}, {s(t4)}, {KV}")
    a(f"s_lshl_b32 {s(t3)}, {s(sTG)}, 7\ns_lshl_b32 {s(t0)}, {s(sCG)}, 3\ns_add_u32 {s(t3)}, {s(t3)}, {s(t0)}\ns_add_u32 {s(t3)}, {s(t3)}, {FKV}")
    prio(2)
    a(f"s_cmp_ge_u32 {s(sCG)}, 4\ns_cbranch_scc1 L_BpV")
    def kvp_read(ks):
        st = F + 8*(ks % 6)
        a.lds(f"ds_read_b128 {v(st,4)}, {v(pX_+(ks&1))} offset:{(ks>>1)*8192}", ("f", ks))
        for rd in range(2): a.lds(f"ds_read_b64_tr_b16 {v(st+4+2*rd,2)}, {v(pT+rd)} offset:{ks*1024}", ("f", ks))
    for m in range(2):
        if m: a("s_branch L_Bp2"); a.label("L_BpV")
        a("s_waitcnt vmcnt(0) lgkmcnt(0)\ns_barrier")
        a.reset()
        for ks in range(5): kvp_read(ks)
        for ks in range(16):
            if ks + 5 < 16: kvp_read(ks + 5)
            st = F + 8*(ks % 6)
            a.wait(lg=("f", ks))
            a(f"v_mfma_f32_16x16x32_bf16 {v(KA,4)}, {v(st+4*(1-m),4)}, {v(st+4*m,4)}, {v(KA,4) if ks else 0}")
    a.label("L_Bp2")
    tag_from_epoch()
    a(f"s_getreg_b32 {s(t0)}, hwreg(HW_REG_XCC_ID, 0, 4)\nv_mov_b32 v246, {s(sTAG)}\nv_mov_b32 v247, {s(t0)}\ns_nop 2")
    a(f"v_cvt_pk_bf16_f32 v252, {v(KA)}, {v(KA+1)}\nv_cvt_pk_bf16_f32 v254, {v(KA)}, {v(KA+1)}\nv_cvt_pk_bf16_f32 v253, {v(KA+2)}, {v(KA+3)}\nv_cvt_pk_bf16_f32 v255, {v(KA+2)}, {v(KA+3)}")
    a("v_permlane16_swap_b32 v252, v254\ns_nop 0\nv_permlane16_swap_b32 v253, v255\ns_mov_b32 exec_lo, 0xffff\ns_mov_b32 exec_hi, 0xffff")
    a(f"buffer_store_dwordx4 v[252:255], {v(pA)}, {s(rWS,4)}, {s(t4)} offen sc1")
    a("s_mov_b64 exec, -1")
    stamp(13)
    prio(0)
    b_wq()
    a(f"s_mov_b64 exec, 1\ns_waitcnt vmcnt(12)\nbuffer_store_dwordx2 v[246:247], off, {s(rWS,4)}, {s(t3)} sc1\ns_mov_b64 exec, -1")
    stamp(2)
    a("s_waitcnt vmcnt(9)\ns_barrier")
    if HOLD < 2: blk_issue(t5, 0, W3OFF0)
    a(f"s_waitcnt vmcnt({7 if HOLD < 2 else 1})")
    a.label("L_B1")
    a.reset()
    stamp(1)
    a("s_barrier")
    b_setup1(); b_setup2()
    a("s_barrier")
    a.c("gate of this wave's 16 tokens")
    z = 200
    def g_read(ks):
        st = WF + 8*(ks % 6)
        a.lds(f"ds_read_b128 {v(st,4)}, {v(vX16+(ks&1))} offset:{(ks>>1)*8192}", ("g", ks))
        a.lds(f"ds_read_b128 {v(st+4,4)}, {v(vGa)} offset:{GW_+ks*64}", ("g", ks))
    if LOC == 2: loc_load(vM1, vM1+2)
    if HOLD == 0: blk_issue(sRING, SLOTOFF[1])
    for ks in range(5): g_read(ks)
    for ks in range(16):
        if ks + 5 < 16: g_read(ks + 5)
        st = WF + 8*(ks % 6)
        a.wait(lg=("g", ks))
        a(f"v_mfma_f32_16x16x32_bf16 {v(z,4)}, {v(st+4,4)}, {v(st,4)}, {v(z,4) if ks else 0}")
    def trs(st, addr, off):
        return [f"ds_read_b64_tr_b16 {v(WF+24*st+12*ks+4*u+2*rd,2)}, {v(addr)} offset:{off + ks*1536 + rd*384 + u*32}"
                for ks in range(2) for u in range(3) for rd in range(2)]
    def xrs(st, off):
        return [f"ds_read_b128 {v(XB+16*st+8*ks+4*t,4)}, {v(vXb+2*st+ks)} offset:{off + t*4096}" for ks in range(2) for t in range(2)]
    for x in xrs(0, 0): a(x)
    prio(2)
    if HOLD:
        lds_wait(vL4, CA_, 4, vC)
        prio(0)
        if HOLD == 2: blk_issue(t5, 0, W3OFF0)
        else: blk_issue(sRING, SLOTOFF[1])
        prio(2)
    else: a("s_nop 2")
    a(f"v_cvt_pk_bf16_f32 {v(z)}, {v(z)}, {v(z)}\nv_and_b32 {v(z)}, 0xffff0000, {v(z)}")
    a(f"v_mul_f32 {v(z)}, {f32(-LOG2E)}, {v(z)}\nv_exp_f32 {v(z)}, {v(z)}\ns_nop 0\nv_add_f32 {v(z)}, 1.0, {v(z)}\nv_rcp_f32 {v(z)}, {v(z)}\ns_nop 0")
    a(f"v_cvt_pk_bf16_f32 {v(z)}, {v(z)}, {v(z)}\nv_and_b32 {v(z)}, 0xffff0000, {v(z)}")
    a(f"ds_write_b32 {v(vGa+1)}, {v(z)} offset:{G_}")
    prio(0)
    b_setup3()
    if P["NPF"]: b_setup4()
    a(f"s_cmp_gt_u32 {s(sU)}, 28\ns_cbranch_scc1 L_Bh")
    if HOLD == 2: blk_issue(sRING, SLOTOFF[1])
    a("s_waitcnt vmcnt(6)")
    for x in trs(0, vTr0, 0): a(x)
    a(f"s_mov_b32 {s(t0)}, 8\ns_mov_b32 {s(sOOB)}, {s(sBLK)}\ns_waitcnt lgkmcnt(0)")
    cyc(40)
    a(".p2align 3")
    a.label("L_ffn1")
    for st in range(2):
        M = [f"v_mfma_f32_32x32x16_bf16 {v(ACC+16*(2*u+t),16)}, {v(WF+24*st+12*ks+4*u,4)}, {v(XB+16*st+8*ks+4*t,4)}, {v(ACC+16*(2*u+t),16)}"
             for ks in range(2) for u in range(3) for t in range(2)]
        T = trs(st ^ 1, vTr, SLOTOFF[st ^ 1]); XR = xrs(st ^ 1, 8192 if st else 0)
        for k in range(3):
            a(M[k]); w13_issue(sRING, SLOTOFF[st], 2*k, sOOB); w13_issue(sRING, SLOTOFF[st], 2*k+1, sOOB)
        if P["PFW"] and st == 0:
            a(f"s_cmp_gt_u32 {s(t0)}, 4\ns_cselect_b32 {s(t1)}, 0x3ff00000, {s(sPf)}")
            a(f"buffer_load_dword {v(vPF+1)}, {v(vPF)}, {s(rX,4)}, {s(t1)} offen")
        for x in XR: a(x)
        a(M[3]); a(f"s_waitcnt vmcnt({7 if P['PFW'] else 6})")
        for k in range(4):
            for x in T[3*k:3*k+3]: a(x)
            a(M[4+k])
        blk_next()
        if st == 1: a(f"s_sub_u32 {s(t0)}, {s(t0)}, 1")
        a(f"s_cmp_gt_u32 {s(t0)}, 1\ns_cselect_b32 {s(sOOB)}, {s(sBLK)}, 0x7ff00000")
        a(M[8])
        if st == 1:
            a("s_setprio 2")
            for j in range(4): a(f"v_add_u32 {v(vXb+j)}, 0x2000, {v(vXb+j)}")
            a("s_setprio 0")
        a(M[9])
        if P["PFW"] and st == 1:
            a(f"s_add_u32 {s(sPf)}, {s(sPf)}, 32768\ns_cmp_eq_u32 {s(t0)}, 1\ns_cselect_b32 {s(sPf)}, {s(sPo)}, {s(sPf)}")
            a(f"s_cselect_b32 {s(rX)}, {s(rWO)}, {s(rX)}\ns_cselect_b32 {s(rX+1)}, {s(rWO+1)}, {s(rX+1)}\ns_cselect_b32 {s(rX+2)}, {s(rWO+2)}, {s(rX+2)}")
        a(M[10]); a(M[11])
        a("s_waitcnt lgkmcnt(0)")
    if P.get("STAMP2"):
        a(f"s_memtime s[100:101]\ns_add_u32 m0, {s(t0)}, 32\ns_setprio 2\ns_waitcnt lgkmcnt(0)\nv_writelane_b32 v{VST}, s100, m0\ns_setprio 0")
    a(f"s_cmp_lg_u32 {s(t0)}, 0\ns_cbranch_scc1 L_ffn1")
    stamp(3)
    a.label("L_Bh")
    a.reset()
    a(f"s_waitcnt vmcnt(0)\nds_add_u32 {v(vL4)}, {v(vONE)} offset:{CB_}")
    a.c("---- SwiGLU epilogue, publish h; prefetch [w2; wo] column slice into the shared ring")
    prio(2)
    if LOC == 2:
        loc_eval(vM1)
        a(f"s_cselect_b32 {s(sLOC)}, 1, 0\ns_cselect_b32 {s(t1)}, {s(rH+2)}, 0\ns_cselect_b32 {s(rH+2)}, 0, {s(rH+2)}")
        srd(a, rB, rH, s(t1))
    a(f"s_mul_i32 {s(t3)}, {s(sU)}, 3")
    NSL = 26
    wn = [0]
    def w_issue():
        st = wn[0]; wn[0] += 1
        a(f"s_add_u32 m0, {s(sM0)}, {(st % NSL)*4096}")
        if st < 44:
            a(f"s_add_u32 {s(t0)}, {s(sWg)}, {(st & 3)*32768}")
            dma(vD2, rW2, s(t0), ("w", st))
            if st & 3 == 3: a(f"s_add_u32 {s(sWg)}, {s(sWg)}, 0x20000\ns_cmp_eq_u32 {s(sWg)}, {11<<17}\ns_cselect_b32 {s(sWg)}, 0, {s(sWg)}")
        else:
            r, ci = (st - 44) >> 3, (st - 44) & 7
            a(f"s_mov_b32 {s(t0)}, {(2*ci+r)*32768}")
            dma(vD2, rWO, s(t0), ("w", st))
    NPF = P.get("NPF", 4)
    for u in range(3):
        a.c("h fragment address: (2*(U&1) + t)*JS + (U>>1)*1K")
        a(f"s_and_b32 {s(t4)}, {s(t3)}, 1\ns_mul_i32 {s(t4)}, {s(t4)}, {2*JS-512}\ns_lshl_b32 {s(t5)}, {s(t3)}, 9\ns_add_u32 {s(t4)}, {s(t4)}, {s(t5)}\ns_add_u32 {s(t5)}, {s(t4)}, {JS}\ns_add_u32 {s(t3)}, {s(t3)}, 1")
        for t in range(2):
            A_ = ACC + 16*(2*u+t)
            for i in range(0, 8, 2): a(f"v_pk_mul_f32 {v(TM+i,2)}, {v(A_+i,2)}, {s(sC0,2)}")
            for i in range(8): a(f"v_exp_f32 {v(TM+i)}, {v(TM+i)}")
            for i in range(0, 8, 2): a(f"v_pk_mul_f32 {v(A_+i,2)}, {v(A_+i,2)}, {v(A_+8+i,2)}")
            for i in range(0, 8, 2): a(f"v_pk_add_f32 {v(TM+i,2)}, {v(TM+i,2)}, {s(sC0+2,2)}")
            for i in range(8): a(f"v_rcp_f32 {v(TM+i)}, {v(TM+i)}")
            for i in range(0, 8, 2): a(f"v_pk_mul_f32 {v(A_+i,2)}, {v(A_+i,2)}, {v(TM+i,2)}")
            for i in range(4): a(f"v_cvt_pk_bf16_f32 {v(A_+8+i)}, {v(A_+2*i)}, {v(A_+2*i+1)}")
            xstore("dwordx4", v(A_+8,4), f"{v(vL16)} offen", rH, rB, s(t4+t), LOC == 2, "st")
            if u == 0 and t == 0 and NPF:
                lds_wait(vL4, CA_, 8, TM, 1); lds_wait(vL4, CB_, -4, TM, 1)
                a(f"ds_read_b32 {v(vG1)}, {v(vG1)} offset:{G_}")
            if u < 2 and NPF:
                prio(0)
                for _ in range(NPF): w_issue()
                prio(2)
    stamp(4)
    if not NPF:
        b_setup4()
        lds_wait(vL4, CA_, 8, TM, 1); lds_wait(vL4, CB_, -4, TM, 1)
        a(f"ds_read_b32 {v(vG1)}, {v(vG1)} offset:{G_}")
    b_setup5()
    a.wait(vm="st")
    a("s_mov_b64 exec, 1")
    if LOC == 2:
        a(f"s_cmp_eq_u32 {s(sLOC)}, 0\ns_cbranch_scc1 L_B3\nbuffer_store_dword {v(vTAG)}, off, {s(rWS,4)}, {s(sFo)}\ns_branch L_B3b")
        a.label("L_B3")
    a(f"buffer_store_dword {v(vTAG)}, off, {s(rWS,4)}, {s(sFo)} sc1")
    if LOC == 2: a.label("L_B3b")
    a.c("every workgroup has published K / V under this launch's tag, so all have read the old epoch: hand it over")
    a(f"s_or_b32 {s(t0)}, s2, {s(sW)}\ns_cbranch_scc1 L_B4\nbuffer_store_dword {v(vTAG)}, off, {s(rWS,4)}, 0 sc1")
    a.label("L_B4")
    a("s_mov_b64 exec, -1")
    stamp(5)
    prio(0)
    while wn[0] < NSL:
        w_issue(); a(f"s_waitcnt vmcnt({P.get('THR', 6)})")
    prio(2)
    cyc(42)
    spin_init(); a.label("L_hpoll")
    a(f"buffer_load_dword {v(TM)}, {v(vFl)}, {s(rWS,4)}, {s(sFh)} offen sc1\ns_waitcnt vmcnt(0)")
    a(f"v_cmp_ne_u32 vcc, {s(sTAG)}, {v(TM)}")
    spin_back("L_hpoll", P.get("HSLEEP", 2))
    a(f"ds_add_u32 {v(vL4)}, {v(vONE)} offset:{CB_}")
    if P["WB"]:
        a(f"s_cmp_lg_u32 {s(sU)}, 31\ns_cbranch_scc1 L_B7\nbuffer_wbl2 sc1"); a.label("L_B7")
    a.reset()
    stamp(6)
    AO, WB, HF, DH = 16, 48, 64, P.get('DH', 8)
    OF, WOF, RT = 96, 128, 48
    def h_issue(st):
        a.vmem(f"buffer_load_dwordx4 {v(HF+4*(st%DH),4)}, {v(vL16)}, {s(rDBG,4)}, {s(sHg)} offen offset:{(st&3)*1024} sc1", ("h", st))
        if st & 3 == 3: a(f"s_add_u32 {s(sHg)}, {s(sHg)}, 4096\ns_cmp_eq_u32 {s(sHg)}, {11<<12}\ns_cselect_b32 {s(sHg)}, 0, {s(sHg)}")
    def w_pull(st, dst, tag, cus=(0, 1)):
        sl = st % NSL
        for cu in cus:
            for rd in range(2):
                a.lds(f"ds_read_b64_tr_b16 {v(dst+4*cu+2*rd,2)}, {v(vT2+2*(sl>>4)+cu)} offset:{(sl&15)*4096+rd*1024}", tag)
    prio(0)
    for st in range(DH): h_issue(st)
    prio(2)
    lds_wait(vL4, CB_, 0, vC, 1)
    a(f"v_sub_f32 {v(vG1)}, 1.0, {v(vG1)}\nv_cvt_pk_bf16_f32 {v(vG1)}, {v(vG1)}, {v(vG1)}\nv_and_b32 {v(vG1)}, 0xffff0000, {v(vG1)}")
    PF2 = P.get("PF2", 0)
    prio(PF2)
    w_pull(0, WB, ("t", 0))
    adds = {8: None, 22: 34, 33: 43}
    upto = {8: 35, 22: 49, 33: 60}
    thr = 0; allowed = NSL
    for st in range(44):
        M = [f"v_mfma_f32_32x32x16_bf16 {v(AO+16*cu,16)}, {v(WB+8*(st&1)+4*cu,4)}, {v(HF+4*(st%DH),4)}, {v(AO+16*cu,16) if st else 0}" for cu in range(2)]
        a.wait(vm=("h", st), lg=("t", st))
        a(M[0])
        if st + 1 < 44: w_pull(st + 1, WB + 8*((st+1) & 1), ("t", st + 1))
        if st + 1 in adds:
            if adds[st+1]: a.wait(vm=("w", adds[st+1]))
            a.lds(f"ds_add_u32 {v(vL4)}, {v(vONE)} offset:{CB_}"); thr += 4
        if st in adds: a.lds(f"ds_read_b32 {v(vC)}, {v(vL4)} offset:{CB_}", "c")
        a(M[1])
        if st + DH < 44: h_issue(st + DH)
        if P.get("STAMP2") and st % 4 == 0 and st < 40: a(f"s_memtime s[{4+st//2}:{5+st//2}]")
        if st in adds:
            l0, l1 = a.newlabel("L_cs"), a.newlabel("L_cg")
            a("s_setprio 2"); a.wait(lg="c")
            a(f"v_cmp_gt_i32 vcc, {thr}, {v(vC)}\ns_cbranch_vccnz {l0}"); a.label(l1); a(f"s_setprio {PF2}")
            tail.append((l0, l1, thr)); allowed = upto[st]
        for _ in range(2 if (22 <= st < 26 or st >= 33) else 1):
            if wn[0] < allowed: w_issue()
    assert wn[0] == 60, wn[0]
    if P.get("STAMP2"):
        a("s_setprio 3\ns_waitcnt lgkmcnt(0)")
        for k in range(10): a(f"v_writelane_b32 v{VST}, s{4+2*k}, {48+k}")
    stamp(7)
    prio(2)
    a.wait_all(lg=False)
    a(f"ds_add_u32 {v(vL4)}, {v(vONE)} offset:{CB_}\nds_read_b32 {v(RT)}, {v(vLa)} offset:{L_+12*256}"); thr += 4
    def o_loads(r):
        for ci in range(8):
            a(f"buffer_load_dwordx4 {v(OF+4*ci,4)}, {v(vL16)}, {s(rWS,4)}, {s(sOr+ci//2)} offen offset:{(ci&1)*2048+r*1024} sc1")
    a.c("if the partner A wave is already past its first o tile, fetch the first half of o now")
    a(f"s_waitcnt lgkmcnt(0)\nv_cmp_eq_u32 {s(t1,2)}, -1, {v(RT)}\ns_cmp_lg_u64 {s(t1,2)}, 0\ns_cbranch_scc1 L_B6")
    o_loads(0)
    a.label("L_B6")
    a("s_nop 2")
    for i in range(0, 32, 2): a(f"v_pk_mul_f32 {v(AO+i,2)}, {v(AO+i,2)}, v[12:13] op_sel:[0,1] op_sel_hi:[1,1]")
    lds_wait(vL4, CB_, thr, vC, 1)
    for ci in range(8): w_pull(44 + ci, WOF + 8*ci, None)
    stamp(8)
    spin_init()
    a(f"s_cmp_eq_u64 {s(t1,2)}, 0\ns_cbranch_scc1 L_ochk0")
    a.label("L_r1wait")
    a(f"ds_read_b32 {v(vC)}, {v(vLa)} offset:{L_+12*256}\ns_waitcnt lgkmcnt(0)\nv_cmp_eq_u32 vcc, -1, {v(vC)}")
    spin_back("L_r1wait", 2)
    def o_round(r, sleep):
        lbl = f"L_opoll{r}"
        spin_init(); a.label(lbl)
        o_loads(r)
        a.label(f"L_ochk{r}")
        a("s_waitcnt vmcnt(5)")
        a(f"v_max3_u32 {v(vC)}, {v(OF)}, {v(OF+4)}, {v(OF+8)}\ns_waitcnt vmcnt(3)\nv_max3_u32 {v(vC)}, {v(vC)}, {v(OF+12)}, {v(OF+16)}")
        a(f"s_waitcnt vmcnt(1)\nv_max3_u32 {v(vC)}, {v(vC)}, {v(OF+20)}, {v(OF+24)}\ns_waitcnt vmcnt(0) lgkmcnt(0)\nv_max_u32 {v(vC)}, {v(vC)}, {v(OF+28)}")
        a(f"v_cmp_eq_u32 vcc, -1, {v(vC)}")
        spin_back(lbl, sleep)
    def o_mfma(r, cu, ci): a(f"v_mfma_f32_32x32x16_bf16 {v(AO+16*cu,16)}, {v(WOF+64*r+8*ci+4*cu,4)}, {v(OF+4*ci,4)}, {v(AO+16*cu,16)}")
    o_round(0, 4)
    stamp(9)
    prio(0)
    for ci in range(8):
        for cu in range(2):
            o_mfma(0, cu, ci); w_pull(52 + ci, WOF + 64 + 8*ci, None, (cu,))
    stamp(10)
    prio(2)
    a("s_barrier")
    stamp(11)
    o_round(1, None)
    a.c("the other column half goes to the partner wave through LDS")
    for ci in range(8): o_mfma(1, 1, ci)
    for ci in range(4): o_mfma(1, 0, ci)
    a("s_nop 7")
    for q in range(4):
        a(f"ds_write_b128 v5, {v(AO+16+4*q,4)} offset:{O1_+q*1024}"); o_mfma(1, 0, 4 + q)
    a("s_waitcnt lgkmcnt(0)\ns_barrier")
    for q in range(4): a(f"ds_read_b128 {v(AO+16+4*q,4)}, v4 offset:{O1_+q*1024}")
    a("s_nop 5")
    for hf in range(2):
        a(f"s_waitcnt lgkmcnt({2-2*hf})")
        for i in range(8*hf, 8*hf+8, 2): a(f"v_pk_add_f32 {v(AO+i,2)}, {v(AO+i,2)}, {v(AO+16+i,2)}")
        for i in range(4*hf, 4*hf+4): a(f"v_cvt_pk_bf16_f32 {v(RT+i)}, {v(AO+2*i)}, {v(AO+2*i+1)}")
        a(f"buffer_store_dwordx4 {v(RT+4*hf,4)}, v3, {s(rOUT,4)}, {s(t4)} offen offset:{32*hf} {P.get('OUTMOD','')}")
    stamp(12); stamp_out()
    if P.get("DIAG"):
        if P.get("DIAGA"): a("s_endpgm"); a.label("L_hold")
        a(f"s_waitcnt lgkmcnt(0)\ns_sub_u32 s94, s94, s92\ns_mul_i32 s94, s94, {P.get('DIAGK',0)}\ns_add_u32 s94, s94, {P['DIAG']}")
        a("L_diag:\ns_memrealtime s[90:91]\ns_waitcnt lgkmcnt(0)\ns_sub_u32 s90, s90, s92\ns_cmp_lt_u32 s90, s94\ns_cbranch_scc1 L_diag")
    a.label("L_end")
    a.label("L_last")
    a("s_endpgm")
    for l0, l1, th in tail:
        a.label(l0); lds_wait(vL4, CB_, th, vC, 1); a(f"s_branch {l1}")
    for r in range(2): slow_path(f"L_slow{r}", f"L_back{r}", O + 64*r + 48, QF + 16*r + 12, O + 64*r)

    ref = open("cdna_kernels/" + NAME + ".s.ref").read().split("\n")
    head = [l for l in ref if l.startswith(";") and "@launch" not in l and "Override" not in l and "grid=ceil" not in l]
    out = "\n".join(head) + f"\n; @launch grid=(256,1,1) block=(512,1,1) lds={LDS_BYTES}\n"
    out += f""".amdgcn_target "amdgcn-amd-amdhsa--gfx950"
.text
.globl {NAME}_kernel
.p2align 8
.type {NAME}_kernel,@function
{NAME}_kernel:
"""
    out += a.text()
    out += f""".section .rodata,"a"
.p2align 6
.amdhsa_kernel {NAME}_kernel
  .amdhsa_next_free_vgpr 256
  .amdhsa_next_free_sgpr 102
  .amdhsa_accum_offset 256
  .amdhsa_group_segment_fixed_size 0
  .amdhsa_kernarg_size 104
  .amdhsa_user_sgpr_count 2
  .amdhsa_user_sgpr_kernarg_segment_ptr 1
  .amdhsa_system_sgpr_workgroup_id_x 1
  .amdhsa_float_denorm_mode_32 3
.end_amdhsa_kernel
"""
    errs = check_hazards(a.text())
    for e in errs: print("HAZARD need %d have %d:\n   %d: %s\n   %d: %s" % (e[2], e[3], e[0], e[4], e[1], e[5]), file=sys.stderr)
    return out, errs

if __name__ == "__main__":
    kw = {}
    path = "cdna_kernels/" + NAME + ".s"
    for arg in sys.argv[1:]:
        if "=" in arg:
            k, val = arg.split("=", 1)
            kw[k] = int(val) if val.lstrip("-").isdigit() else val
        else: path = arg
    out, errs = gen(**kw)
    open(path, "w").write(out)
    print("wrote", path, len(out.split("\n")), "lines;", len(errs), "hazards")
```
